```python
import torch

def _softmax(x, axis=-1):
    return torch.softmax(x, dim=axis)
def _gelu(x):
    return torch.nn.functional.gelu(x, approximate="tanh")
def _silu(x):
    return torch.nn.functional.silu(x)
def _sigmoid(x):
    return torch.sigmoid(x)
def _layernorm(x, axis=-1, eps=1e-5):
    m = x.mean(dim=axis, keepdim=True)
    v = x.var(dim=axis, keepdim=True, unbiased=False)
    return (x - m) / torch.sqrt(v + eps)
def _scatter_add(tgt, idx, src, axis=0):
    return tgt.clone().index_add_(axis, idx, src)
def _segment_sum(src, seg, n):
    out = torch.zeros((n,) + src.shape[1:], dtype=src.dtype)
    return out.index_add_(0, seg, src)
def _pad(x, pw):
    flat = tuple(v for pair in reversed(pw) for v in pair)
    return torch.nn.functional.pad(x, flat)

kernel_name = 'interleave_layers__spectral_fnet__geglu_ffn__prompt'

def setup_inputs():

    _w = (lambda a: (lambda t: t.to(torch.bfloat16) if t.is_floating_point() else t)(torch.as_tensor(a)))
    def _A_setup():
        B, S, D = 1, 2048, 512
        ns = torch.arange(S)[:, None] * torch.arange(S)[None, :]
        nd = torch.arange(D)[:, None] * torch.arange(D)[None, :]
        Ws_re = torch.cos(-2.0 * torch.pi * ns / S).to(float)
        Ws_im = torch.sin(-2.0 * torch.pi * ns / S).to(float)
        Wd_re = torch.cos(-2.0 * torch.pi * nd / D).to(float)
        Wd_im = torch.sin(-2.0 * torch.pi * nd / D).to(float)
        return {
            "x": _w((lambda *s: torch.randn(*s, dtype=torch.bfloat16) * 0.05)(B, S, D)),
            "dft_seq_re": _w(Ws_re),
            "dft_seq_im": _w(Ws_im),
            "dft_hid_re": _w(Wd_re),
            "dft_hid_im": _w(Wd_im),
        }
    _A_in = _A_setup()

    def _B_setup():
        B, S, D, F = 1, 2048, 512, 1792
        return {
            "x": _w((lambda *s: torch.randn(*s, dtype=torch.bfloat16) * 0.05)(B, S, D)),
            "w_gate": _w((lambda *s: torch.randn(*s, dtype=torch.bfloat16) * 0.4)(D, F)),
            "w_up": _w((lambda *s: torch.randn(*s, dtype=torch.bfloat16) * 0.4)(D, F)),
            "w_down": _w((lambda *s: torch.randn(*s, dtype=torch.bfloat16) * 0.4)(F, D)),
        }
    _B_in = _B_setup()

    return {
        "A_x": _A_in["x"],
        "A_dft_seq_re": _A_in["dft_seq_re"],
        "A_dft_seq_im": _A_in["dft_seq_im"],
        "A_dft_hid_re": _A_in["dft_hid_re"],
        "A_dft_hid_im": _A_in["dft_hid_im"],
        "B_x": _B_in["x"],
        "B_w_gate": _B_in["w_gate"],
        "B_w_up": _B_in["w_up"],
        "B_w_down": _B_in["w_down"],
    }

def reference(A_x, A_dft_seq_re, A_dft_seq_im, A_dft_hid_re, A_dft_hid_im, B_x, B_w_gate, B_w_up, B_w_down):
    def _A_ref(x, dft_seq_re, dft_seq_im, dft_hid_re, dft_hid_im):
        a = torch.einsum("bsd,ed->bse", x, dft_hid_re)
        b = torch.einsum("bsd,ed->bse", x, dft_hid_im)
        y = torch.einsum("ts,bse->bte", dft_seq_re, a) - torch.einsum("ts,bse->bte", dft_seq_im, b)
        return y

    def _B_ref(x, w_gate, w_up, w_down):
        return (_gelu(x @ w_gate) * (x @ w_up)) @ w_down

    x = A_x
    x = x + _A_ref(_layernorm(x, axis=-1), A_dft_seq_re, A_dft_seq_im, A_dft_hid_re, A_dft_hid_im)
    x = x + _B_ref(_layernorm(x, axis=-1), B_w_gate, B_w_up, B_w_down)
    x = x + _A_ref(_layernorm(x, axis=-1), A_dft_seq_re, A_dft_seq_im, A_dft_hid_re, A_dft_hid_im)
    x = x + _B_ref(_layernorm(x, axis=-1), B_w_gate, B_w_up, B_w_down)
    return x
```

```python
NAME = "interleave_layers__spectral_fnet__geglu_ffn__prompt"
WS_V, WS_XP, WS_XN, WS_H, WS_X2, WS_WA, WS_WD = 0x0, 0x200000, 0x400000, 0x600000, 0xE00000, 0x1000000, 0x1400000
import os
PROF = int(os.environ.get("PROF", "0"))
PROFWG = int(os.environ.get("PROFWG", "9"))
class Asm:
    def __init__(s):
        s.L = []
    def __call__(s, t):
        for ln in t.strip("\n").split("\n"):
            s.L.append("    " + ln.strip())
    def label(s, n):
        s.L.append(n + ":")
    def raw(s, t):
        s.L.append(t)
    def stamp(s, i):
        if PROF == 2:
            if i == 0: s("s_memrealtime s[64:65]")
        elif PROF: s(f"s_memtime s[{64+2*i}:{65+2*i}]")
    def dump(s, n, tag):
        if not PROF: return
        if PROF == 2:
            s(f"s_waitcnt lgkmcnt(0) vmcnt(0)\ns_memrealtime s[66:67]\ns_waitcnt lgkmcnt(0)\ns_cmp_lg_u32 s4, 0\ns_cbranch_scc1 nodump_{tag}")
            s("s_add_u32 s96, s54, 0x1800000\ns_addc_u32 s97, s55, 0\ns_mov_b32 s98, 0x10000\ns_mov_b32 s99, 0x00020000")
            s("s_bfe_u32 s68, s52, 0x30009\ns_lshl_b32 s68, s68, 12\ns_lshl_b32 s69, s2, 3\ns_add_u32 s68, s68, s69\nv_mov_b32 v0, s68\nv_mov_b32 v2, s64\nv_mov_b32 v3, s66\nbuffer_store_dwordx2 v[2:3], v0, s[96:99], 0 offen")
            s.label(f"nodump_{tag}")
            return
        s(f"s_waitcnt lgkmcnt(0) vmcnt(0)\ns_memtime s[{64+2*n}:{65+2*n}]\ns_waitcnt lgkmcnt(0)\ns_cmp_lg_u32 s2, {PROFWG}\ns_cbranch_scc1 nodump_{tag}\ns_cmp_lg_u32 s4, 0\ns_cbranch_scc1 nodump_{tag}")
        s("s_mov_b32 s96, s52\ns_mov_b32 s97, s53\ns_mov_b32 s98, 256\ns_mov_b32 s99, 0x00020000\nv_mov_b32 v0, 0")
        for i in range(n+1):
            s(f"v_mov_b32 v1, s{64+2*i}\nbuffer_store_dword v1, v0, s[96:99], 0 offen offset:{4*i}")
        s.label(f"nodump_{tag}")
    def text(s):
        return "\n".join(s.L) + "\n"
def vr(b, n=1):
    return f"v{b}" if n == 1 else f"v[{b}:{b+n-1}]"
def sr(b, n=1):
    return f"s{b}" if n == 1 else f"s[{b}:{b+n-1}]"
def srd(a, d, base, off, size):
    if off:
        a(f"s_add_u32 s{d}, s{base}, 0x{off:x}\ns_addc_u32 s{d+1}, s{base+1}, 0")
    else:
        a(f"s_mov_b32 s{d}, s{base}\ns_mov_b32 s{d+1}, s{base+1}")
    a(f"s_mov_b32 s{d+2}, 0x{size:x}\ns_mov_b32 s{d+3}, 0x00020000")
```

```python
from gen_common import *
def prologue(a):
    a("""s_load_dwordx16 s[32:47], s[0:1], 0
    s_load_dwordx8 s[48:55], s[0:1], 64
    v_and_b32 v1, 63, v0
    v_lshrrev_b32 v4, 6, v0
    v_and_b32 v2, 15, v0
    v_bfe_u32 v3, v0, 4, 2
    v_readfirstlane_b32 s4, v4""")

def gen_ka(a):
    X, TF, ACC, SUM, SQ, CS, ONES = 64, 32, 8, 24, 28, 128, 132
    TB = 65536
    for lay in (0, 1):
        a.raw(f".p2align 8\n.globl ka{lay}_kernel\n.type ka{lay}_kernel,@function")
        a.label(f"ka{lay}_kernel")
        a(f"s_mov_b32 s3, {lay}\ns_branch ka_body")
    a.label("ka_body")
    a.stamp(0)
    prologue(a)
    a("""s_cmp_ge_u32 s2, 256
    s_cbranch_scc1 ka_exit
    s_and_b32 s5, s2, 7
    s_lshl_b32 s5, s5, 2
    s_bfe_u32 s6, s2, 0x20003
    s_add_u32 s5, s5, s6
    s_lshr_b32 s6, s2, 5
    v_and_b32 v4, 15, v1
    v_lshrrev_b32 v5, 4, v1""")
    a("""s_lshl_b32 s7, s4, 19
    s_lshl_b32 s28, s5, 10
    s_add_u32 s28, s28, s7
    s_and_b32 s7, s4, 1
    s_lshl_b32 s7, s7, 4
    s_lshl_b32 s29, s6, 5
    s_add_u32 s7, s7, s29
    v_mov_b32 v9, 0x100""")
    for i in range(4):
        a(f"""v_add_u32 v6, {4*i}, v5
        v_xor_b32 v7, v4, v6
        v_lshlrev_b32 v7, 4, v7
        v_lshl_add_u32 v{136+i}, v6, 15, v7
        v_add_u32 v{136+i}, s28, v{136+i}
        v_add_u32 v6, s7, v6
        v_cmp_eq_u32 vcc, 0, v6
        v_cndmask_b32 v6, v6, v9, vcc
        v_lshl_add_u32 v{140+i}, v6, 10, v7""")
    a("s_waitcnt lgkmcnt(0)")
    a.stamp(1)
    a(f"""s_add_u32 s12, s54, 0x{WS_X2:x}
    s_addc_u32 s13, s55, 0
    s_cmp_eq_u32 s3, 0
    s_cselect_b32 s8, s32, s12
    s_cselect_b32 s9, s33, s13
    s_mov_b32 s10, 0x200000
    s_mov_b32 s11, 0x00020000
    s_cmp_lt_u32 s4, 2
    s_cselect_b32 s12, s38, s40
    s_cselect_b32 s13, s39, s41
    s_mov_b32 s14, 0x80000
    s_mov_b32 s15, 0x00020000
    s_lshl_b32 s30, s4, 12""")
    def issue(kq):
        for i in range(4):
            a(f"s_add_u32 m0, s30, {TB + kq*16384 + i*1024 - kq*256}")
            a(f"s_nop 0\nbuffer_load_dwordx4 v{140+i}, s[12:15], 0 offen offset:{kq*256} lds")
            a(f"s_add_u32 m0, s30, {kq*16384 + i*1024 - kq*256}")
            a(f"s_nop 0\nbuffer_load_dwordx4 v{136+i}, s[8:11], 0 offen offset:{kq*256} lds")
    issue(0); issue(1)
    a.stamp(9)
    srd(a, 24, 54, WS_V, 0x200000)
    a("""s_lshl_b32 s7, s4, 4
    v_add_u32 v4, s7, v2
    v_lshlrev_b32 v5, 8, v3
    v_add_u32 v5, s5, v5
    v_mul_lo_u32 v5, v5, v4
    v_lshlrev_b32 v6, 5, v4
    v_and_b32 v7, 1, v4
    v_mov_b32 v8, 0x80008000
    v_mul_lo_u32 v7, v7, v8""")
    for j in range(8):
        a(f"""v_and_b32 v9, 0x7ff, v5
        v_cvt_f32_u32 v9, v9
        v_mul_f32 v9, 0x3a000000, v9
        v_cos_f32 v{10+j}, v9
        v_sin_f32 v{18+j}, v9""")
        if j < 7: a("v_add_u32 v5, v5, v6")
    for jj in range(4):
        a(f"""v_cvt_pk_bf16_f32 v{180+jj}, v{10+2*jj}, v{11+2*jj}
        v_cvt_pk_bf16_f32 v{196+jj}, v{18+2*jj}, v{19+2*jj}
        v_xor_b32 v{184+jj}, v7, v{180+jj}
        v_xor_b32 v{200+jj}, v7, v{196+jj}
        v_xor_b32 v{188+jj}, v8, v{196+jj}
        v_xor_b32 v{192+jj}, v8, v{200+jj}""")
    for jj in range(4):
        a(f"v_add_u32 v4, {4*jj}, v3\nv_xor_b32 v4, v4, v2\nv_lshlrev_b32 v4, 4, v4\nv_lshl_add_u32 v{146+jj}, v2, 8, v4")
        a(f"v_add_u32 v{150+jj}, s30, v{146+jj}")
    for i in range(4):
        a(f"s_add_u32 s7, s4, {i}\ns_and_b32 s7, s7, 3\ns_lshl_b32 s7, s7, 12\ns_add_u32 s{56+i}, s7, {TB}")
    for jj in range(4):
        for i in range(4):
            a(f"v_add_u32 v{156+4*jj+i}, s{56+i}, v{146+jj}")
    for i in range(4):
        a(f"v_mov_b32 v{ONES+i}, 0x3f803f80")
    def rd(j):
        b = TF + 16*(j & 1); kq = j >> 2; jj = j & 3
        a(f"ds_read_b128 {vr(X+4*(j&1),4)}, v{150+jj} offset:{kq*16384}")
        for i in range(4):
            a(f"ds_read_b128 {vr(b+4*i,4)}, v{156+4*jj+i} offset:{kq*16384}")
    for grp in range(4):
        a(f"s_waitcnt vmcnt({(8, 8, 8, 0)[grp]})\ns_barrier")
        a.stamp(2+grp)
        if grp < 2: issue(grp+2)
        rd(4*grp)
        for j in range(4*grp, 4*grp+4):
            if j % 4 != 3:
                rd(j+1); a("s_waitcnt lgkmcnt(5)")
            else:
                a("s_waitcnt lgkmcnt(0)")
            b = TF + 16*(j & 1); x = vr(X+4*(j&1), 4)
            c = lambda r: "0" if j == 0 else vr(r, 4)
            for i in range(4):
                a(f"v_mfma_f32_16x16x32_bf16 {vr(ACC+4*i,4)}, {vr(b+4*i,4)}, {x}, {c(ACC+4*i)}")
            a(f"v_mfma_f32_16x16x32_bf16 {vr(SUM,4)}, {vr(ONES,4)}, {x}, {c(SUM)}")
            a(f"v_mfma_f32_16x16x32_bf16 {vr(SQ,4)}, {x}, {x}, {c(SQ)}")
            a(f"v_mfma_f32_16x16x32_bf16 {vr(CS,4)}, {vr(b,4)}, {vr(ONES,4)}, {c(CS)}")
    a.stamp(6)
    a(f"""s_nop 7
    s_nop 3
    s_lshl_b32 s7, s4, 6
    v_lshl_add_u32 v4, v3, 4, s7
    v_cmp_eq_u32 vcc, 0, v2
    s_and_saveexec_b64 s[56:57], vcc
    ds_write_b128 v4, {vr(CS,4)}
    s_mov_b64 exec, s[56:57]
    v_and_b32 v5, 3, v2
    v_cmp_eq_u32 vcc, 1, v5
    v_cndmask_b32 v6, v{SQ}, v{SQ+1}, vcc
    v_cmp_eq_u32 vcc, 2, v5
    v_cndmask_b32 v6, v6, v{SQ+2}, vcc
    v_cmp_eq_u32 vcc, 3, v5
    v_cndmask_b32 v6, v6, v{SQ+3}, vcc
    v_lshrrev_b32 v5, 2, v2
    v_lshl_add_u32 v5, v5, 4, v2
    v_lshlrev_b32 v5, 2, v5
    ds_bpermute_b32 v6, v5, v6
    v_mul_f32 v7, 0x3b000000, v{SUM}
    s_waitcnt lgkmcnt(0)
    s_barrier
    v_mul_f32 v6, 0x3b000000, v6
    v_fma_f32 v6, -v7, v7, v6
    v_add_f32 v6, 0x3727c5ac, v6
    v_rsq_f32 v6, v6""")
    for i in range(4):
        a(f"s_add_u32 s7, s4, {i}\ns_and_b32 s7, s7, 3\ns_lshl_b32 s28, s7, 6\nv_lshl_add_u32 v4, v3, 4, s28")
        a(f"ds_read_b128 {vr(TF+4*i,4)}, v4")
        if i == 0:
            a("""v_bfe_u32 v144, v2, 1, 1
            v_bfe_u32 v145, v2, 3, 1
            v_lshl_or_b32 v144, v145, 1, v144
            s_lshl_b32 s29, s4, 4
            v_add_u32 v145, s29, v2
            v_lshlrev_b32 v145, 7, v145
            v_lshl_add_u32 v145, v3, 3, v145
            v_add_u32 v145, 1024, v145""")
        a(f"v_xor_b32 v5, s7, v144\nv_lshl_add_u32 v{146+i}, v5, 5, v145")
    a("v_sub_f32 v7, 0, v7\ns_waitcnt lgkmcnt(0)")
    for i in range(4):
        for r in range(4):
            a(f"v_fma_f32 v{ACC+4*i+r}, v7, v{TF+4*i+r}, v{ACC+4*i+r}")
            a(f"v_mul_f32 v{ACC+4*i+r}, v6, v{ACC+4*i+r}")
        a(f"v_cvt_pk_bf16_f32 v{ACC+4*i}, v{ACC+4*i}, v{ACC+4*i+1}")
        a(f"v_cvt_pk_bf16_f32 v{ACC+4*i+1}, v{ACC+4*i+2}, v{ACC+4*i+3}")
        a(f"ds_write_b64 v{146+i}, {vr(ACC+4*i,2)}")
    a("""v_lshrrev_b32 v4, 2, v2
    v_and_b32 v5, 3, v2
    v_lshrrev_b32 v6, 1, v4
    v_and_b32 v7, 1, v3
    v_lshl_or_b32 v6, v7, 1, v6
    v_lshl_add_u32 v7, v3, 3, v4
    v_lshlrev_b32 v7, 7, v7
    v_lshrrev_b32 v150, 1, v5
    v_xor_b32 v150, v150, v6
    v_and_b32 v151, 1, v5
    v_lshlrev_b32 v151, 4, v151
    v_add_u32 v151, v151, v7
    v_add_u32 v151, 1024, v151
    v_lshl_add_u32 v152, v150, 5, v151
    v_xor_b32 v150, 2, v150
    v_lshl_add_u32 v153, v150, 5, v151
    s_waitcnt lgkmcnt(0)
    s_barrier""")
    a.stamp(7)
    for cc in (0, 1):
        for st in (0, 1):
            for kap in (0, 1):
                for u in (0, 1):
                    a(f"ds_read_b64_tr_b16 {vr(64+16*cc+8*st+4*kap+2*u,2)}, v{152+cc} offset:{kap*4096+u*512+st*8}")
    a("s_waitcnt lgkmcnt(0)")
    for st in (0, 1):
        for out in (0, 1):
            d = vr(96+8*out+4*st, 4)
            first = True
            for kap in (0, 1):
                A1 = vr(64+16*out+8*st+4*kap, 4)
                A2 = vr(64+16*(1-out)+8*st+4*kap, 4)
                B2 = vr((196 if out == 0 else 188)+4*kap, 4)
                a(f"v_mfma_f32_16x16x32_bf16 {d}, {A1}, {vr(180+4*kap,4)}, {'0' if first else d}")
                a(f"v_mfma_f32_16x16x32_bf16 {d}, {A2}, {B2}, {d}")
                first = False
    a("""s_lshl_b32 s7, s4, 4
    v_add_u32 v4, s7, v2
    v_lshlrev_b32 v4, 15, v4
    v_lshl_add_u32 v4, v3, 4, v4
    s_lshl_b32 s28, s5, 10
    s_lshl_b32 s29, s6, 6
    s_add_u32 s28, s28, s29
    v_add_u32 v4, s28, v4
    s_waitcnt vmcnt(0)
    s_nop 7""")
    for out in (0, 1):
        b = 96+8*out
        a(f"""v_cvt_pk_bf16_f32 v{b}, v{b}, v{b+1}
        v_cvt_pk_bf16_f32 v{b+1}, v{b+2}, v{b+3}
        v_cvt_pk_bf16_f32 v{b+2}, v{b+4}, v{b+5}
        v_cvt_pk_bf16_f32 v{b+3}, v{b+6}, v{b+7}
        buffer_store_dwordx4 {vr(b,4)}, v4, s[24:27], 0 offen offset:{out*512}""")
    a.stamp(8)
    a.label("ka_done")
    a.dump(12, "ka")
    a.label("ka_exit")
    a("s_endpgm")


def gen_prep(a):
    srd(a, 40, 44, 0, 512*1792*2); srd(a, 44, 46, 0, 512*1792*2); srd(a, 60, 48, 0, 1792*512*2)
    srd(a, 8, 54, WS_WA, 112*32768); srd(a, 12, 54, WS_WD, 16*112*1024)
    a("""v_and_b32 v6, 7, v1
    v_bfe_u32 v7, v1, 4, 1
    v_lshlrev_b32 v7, 1, v7
    v_xor_b32 v20, v6, v7
    s_lshl_b32 s31, s4, 11""")
    for j in (0, 1):
        a(f"""s_add_u32 s7, s95, {112*j}
        s_lshr_b32 s28, s7, 3
        s_and_b32 s29, s7, 7
        v_lshrrev_b32 v5, 3, v1
        s_lshl_b32 s7, s4, 4
        v_add_u32 v5, s7, v5
        s_lshl_b32 s7, s29, 6
        v_add_u32 v4, s7, v5
        s_movk_i32 s7, 3584
        v_mul_lo_u32 v4, v4, s7
        s_lshl_b32 s7, s28, 7
        v_add_u32 v4, s7, v4
        v_lshl_add_u32 v22, v20, 4, v4
        v_xor_b32 v23, 64, v22
        v_add_u32 v23, 28672, v23
        s_lshl_b32 s7, s28, 6
        v_add_u32 v4, s7, v5
        v_lshlrev_b32 v4, 10, v4
        s_lshl_b32 s7, s29, 7
        v_add_u32 v4, s7, v4
        v_lshl_add_u32 v24, v20, 4, v4
        v_xor_b32 v25, 64, v24
        v_add_u32 v25, 8192, v25""")
        for mi, (R, v) in enumerate(((40, 22), (44, 22), (60, 24))):
            for aa in (0, 1):
                a(f"s_add_u32 m0, s31, {j*24576 + mi*8192 + aa*1024}\ns_nop 0")
                a(f"buffer_load_dwordx4 v{v+aa}, s[{R}:{R+3}], 0 offen lds")
    a("""v_lshrrev_b32 v4, 2, v2
    v_and_b32 v5, 3, v2
    v_lshrrev_b32 v6, 5, v1
    v_bfe_u32 v7, v1, 4, 1
    v_lshrrev_b32 v8, 1, v4
    v_lshl_or_b32 v9, v6, 1, v8
    s_lshl_b32 s7, s4, 4
    v_lshl_add_u32 v10, v6, 3, v4
    v_add_u32 v10, s7, v10
    v_lshlrev_b32 v10, 7, v10
    v_lshl_add_u32 v10, v5, 3, v10
    v_lshl_add_u32 v10, v7, 13, v10
    v_lshl_add_u32 v11, v6, 2, v4
    v_add_u32 v11, s7, v11
    v_lshlrev_b32 v11, 7, v11
    v_lshl_add_u32 v11, v5, 3, v11
    v_add_u32 v11, 16384, v11""")
    for j in (0, 1):
        a(f"s_waitcnt vmcnt({6 if j == 0 else 0})")
        for b in range(4):
            a(f"v_xor_b32 v12, {b}, v9\nv_lshl_add_u32 v12, v12, 5, v10")
            for u in (0, 1): a(f"ds_read_b64_tr_b16 {vr(32+4*b+2*u,2)}, v12 offset:{j*24576+u*512}")
        for aa in (0, 1):
            for u in (0, 1):
                a(f"v_lshl_or_b32 v12, {u}, 1, v8\nv_or_b32 v13, {2*aa}, v7\nv_xor_b32 v12, v12, v13\nv_lshl_add_u32 v12, v12, 5, v11")
                a(f"ds_read_b64_tr_b16 {vr(48+4*aa+2*u,2)}, v12 offset:{j*24576+u*1024}")
        a(f"""s_add_u32 s7, s95, {112*j}
        s_lshr_b32 s28, s7, 3
        s_and_b32 s29, s7, 7
        s_lshl_b32 s7, s28, 7
        s_lshl_b32 s30, s29, 2
        s_add_u32 s7, s7, s30
        s_add_u32 s7, s7, s4
        s_lshl_b32 s7, s7, 10
        v_lshl_add_u32 v14, v1, 4, s7
        s_mul_i32 s7, s29, 224
        s_lshl_b32 s30, s28, 2
        s_add_u32 s7, s7, s30
        s_add_u32 s7, s7, s4
        s_lshl_b32 s7, s7, 10
        v_lshl_add_u32 v15, v1, 4, s7
        s_waitcnt lgkmcnt(0)""")
        for b in range(4):
            a(f"s_mov_b32 s7, {b*32768}\nbuffer_store_dwordx4 {vr(32+4*b,4)}, v14, s[8:11], s7 offen")
        for aa in (0, 1):
            a(f"s_mov_b32 s7, {aa*112*1024}\nbuffer_store_dwordx4 {vr(48+4*aa,4)}, v15, s[12:15], s7 offen")
        if j == 0: a("s_nop 1")
```

```python
from gen_common import *
from gen_ka import prologue
import os
KBX = os.environ.get('KBX', '')
CLAIM = int(os.environ.get('CLAIM', '0'))
def gelu_ops(acc, tmp, out):
    L = []
    for pr in range(4):
        ops = [[], []]
        for e in range(2):
            i = 2*pr+e; g = acc+i; u = acc+8+i; t = tmp+2*e
            ops[e] = [f"v_mul_f32 v{t}, v{g}, v{g}",
                      f"v_fma_f32 v{t}, v{t}, s57, v{tmp+4}",
                      f"v_mul_f32 v{t}, v{t}, v{g}",
                      f"v_exp_f32 v{t}, v{t}",
                      f"v_mul_f32 v{t+1}, v{g}, v{u}",
                      f"v_add_f32 v{t}, 1.0, v{t}",
                      f"v_rcp_f32 v{t}, v{t}",
                      None,
                      f"v_mul_f32 v{t}, v{t}, v{t+1}"]
        for x, y in zip(ops[0], ops[1]):
            if x: L += [x, y]
        L.append(f"v_cvt_pk_bf16_f32 v{out+pr}, v{tmp}, v{tmp+2}")
    return L
def gen_kb(a):
    X, WF, ACC, TMP, OUT = 128, 64, 16, 48, 56
    a.raw(".p2align 8\n.globl kb_kernel\n.type kb_kernel,@function")
    a.label("kb_kernel")
    a.stamp(0)
    prologue(a)
    if CLAIM: claim(a, "kb", 0, 131072)
    a("""s_cmp_ge_u32 s2, 256
    s_cbranch_scc1 kb_exit
    s_and_b32 s5, s2, 3
    s_lshl_b32 s5, s5, 2
    s_bfe_u32 s6, s2, 0x20003
    s_add_u32 s5, s5, s6
    s_bfe_u32 s6, s2, 0x10002
    s_lshl_b32 s6, s6, 3
    s_lshr_b32 s7, s2, 5
    s_add_u32 s6, s6, s7
    s_lshl_b32 s7, s5, 2
    s_add_u32 s7, s7, s4
    s_lshl_b32 s28, s7, 15
    v_lshrrev_b32 v9, 1, v3
    v_lshlrev_b32 v9, 10, v9
    v_and_b32 v10, 1, v3
    v_lshl_add_u32 v9, v10, 9, v9
    v_lshl_add_u32 v9, v2, 4, v9
    v_add_u32 v4, s28, v9
    v_lshlrev_b32 v5, 4, v1
    s_mul_i32 s29, s6, 7
    s_lshl_b32 s30, s29, 15
    s_lshl_b32 s31, s4, 10
    s_add_u32 s58, s30, s31
    s_mul_i32 s28, s7, 112
    s_add_u32 s28, s28, s29
    s_lshl_b32 s28, s28, 10
    v_lshrrev_b32 v11, 1, v3
    v_lshlrev_b32 v11, 3, v11
    v_lshl_add_u32 v11, v10, 9, v11
    v_lshl_add_u32 v11, v2, 4, v11
    v_add_u32 v6, s28, v11
    s_mov_b32 s57, 0xbdd2d3e8
    v_mov_b32 v%d, 0xc0135761
    s_waitcnt lgkmcnt(0)""" % (TMP+4))
    a.stamp(1)
    srd(a, 8, 54, WS_XN, 0x200000); srd(a, 12, 54, WS_WA, 112*32768); srd(a, 16, 54, WS_H, 64*112*1024)
    if 'z' in KBX: a('s_mov_b32 s10, 0')
    if 'w' in KBX: a('s_mov_b32 s14, 0')
    qo = lambda q: (q >> 1)*2048 + (q & 1)*256
    def mf(acc, wf, q, first):
        for rb in (0, 1):
            d = vr(acc + (q & 1)*8 + rb*4, 4)
            a(f"v_mfma_f32_16x16x32_bf16 {d}, {vr(wf,4)}, {vr(X+4*((q & ~1)+rb),4)}, {'0' if first else d}")
    def sub(aa):
        a(f"s_mov_b32 s56, {aa*4096}\ns_add_u32 m0, s31, {aa*4096}\ns_add_u32 s59, s58, {aa*4096}")
        a("buffer_load_dwordx4 v5, s[12:15], s59 offen lds")
        a(f"s_add_u32 m0, s31, {aa*4096+32768}\ns_add_u32 s59, s59, 32768")
        a("buffer_load_dwordx4 v5, s[12:15], s59 offen lds")
        for ks in range(4*aa, 4*aa+4):
            a(f"buffer_load_dwordx4 {vr(X+4*ks,4)}, v4, s[8:11], s56 offen offset:{qo(ks%4)}")
    a("s_lshl_b32 s62, s4, 13\ns_add_u32 s60, s62, 65536\ns_add_u32 s61, s30, s60")
    def wgrp(g):
        a(f"s_add_u32 m0, s60, {g*4096}\ns_add_u32 s59, s61, {g*4096}")
        for i in range(4):
            a(f"buffer_load_dwordx4 v5, s[12:15], s59 offen offset:{i*1024} lds")
    def wadv(): a("s_add_u32 s61, s61, 32768\ns_add_u32 s60, s60, 32768\ns_and_b32 s60, s60, 0x1ffff")
    for aa in range(3): sub(aa)
    cnt = [6]*8 + [8, 8]
    for aa in range(8):
        if aa < 5: sub(aa+3); last = aa+3
        elif aa < 7: wgrp(0); wgrp(1); wadv(); last = 8 + aa-5
        else: last = 9
        a(f"s_waitcnt vmcnt({sum(cnt[aa+1:last+1])})\ns_barrier")
        if aa == 0: a.stamp(2)
        sl = lambda t, n: WF + 4*(8*(aa & 1) + 4*t + n)
        for n in range(4):
            for t in (0, 1):
                a(f"ds_read_b128 {vr(sl(t,n),4)}, v9 offset:{t*32768 + qo(4*aa+n)}")
        for n, ks in enumerate(range(4*aa, 4*aa+4)):
            for t in (0, 1):
                a(f"s_waitcnt lgkmcnt({7-2*n-t})")
                mf(ACC+16*t, sl(t,n), ks, ks < 2)
    st = f"buffer_store_dwordx2 {vr(OUT,2)}, v6, s[16:19], 0 offen\nbuffer_store_dwordx2 {vr(OUT+2,2)}, v6, s[16:19], 0 offen offset:256\nv_add_u32 v6, 1024, v6"
    a.stamp(3)
    a("v_add_u32 v7, 0x10000, v9\ns_nop 7\ns_nop 7")
    for x in gelu_ops(ACC, TMP, OUT): a(x)
    a(st)
    a("s_waitcnt vmcnt(8)\ns_barrier")
    for ks in range(8): a(f"ds_read_b128 {vr(WF+4*ks,4)}, v7 offset:{qo(ks)}")
    a("s_mov_b32 s63, 2\ns_branch kb_mid")
    a.label("kb_loop")
    for par in (1, 0):
        if par == 0: a.label("kb_mid")
        ep = gelu_ops(ACC+16*(1-par), TMP, OUT)
        pos = 0
        d = vr(ACC+16*par, 16)
        DS = [int(x) for x in os.environ.get("DS", "2,5,8,11,14,17,20,24").split(",")]
        for ks in range(32):
            A, B = [], []
            if ks < 24: A.append(f"ds_read_b128 {vr(WF+4*((ks+8)%16),4)}, v7 offset:{qo(ks+8)}")
            else: A.append(f"ds_read_b128 {vr(WF+4*((ks+8)%16),4)}, v8 offset:{qo(ks-24)}")
            if ks % 4 == 0: a("s_waitcnt lgkmcnt(4)")
            if ks == 1: B.append("s_cmp_gt_u32 s63, 4\ns_cselect_b32 s14, 0, %s" % ("0" if 'w' in KBX else "0x380000"))
            if ks in DS and 'd' not in KBX:
                g, i = divmod(DS.index(ks), 4)
                if i == 0: A.append(f"s_add_u32 m0, s60, {g*4096}\ns_add_u32 s59, s61, {g*4096}")
                B.append(f"buffer_load_dwordx4 v5, s[12:15], s59 offen offset:{i*1024} lds")
                if ks == DS[-1]: B.append("s_add_u32 s61, s61, 32768\ns_add_u32 s60, s60, 32768\ns_and_b32 s60, s60, 0x1ffff")
            if ks == 20: B.append("v_add_u32 v8, 0x8000, v7\nv_and_b32 v8, 0x1ffff, v8")
            if ks == 22 and 'b' not in KBX: B.append(f"s_waitcnt vmcnt({sum(1 for x in DS if x <= 22)})\ns_barrier")
            if ks >= 2 and 'e' not in KBX:
                CAP = int(os.environ.get("CAP", "3"))
                for L, free in ((A, CAP-1), (B, 0 if (ks in DS or ks == 22) else CAP - (2 if ks == 20 else 0))):
                    while pos < len(ep):
                        c = 2 if ep[pos].startswith(("v_exp", "v_rcp")) else 1
                        if c > free: break
                        L.append(ep[pos]); free -= c; pos += 1
                        if pos == len(ep): B.append(st)
            elif 'e' in KBX: pos = len(ep)
            for rb in (0, 1):
                d = vr(ACC+16*par + (ks & 1)*8 + rb*4, 4)
                a(f"v_mfma_f32_16x16x32_bf16 {d}, {vr(WF+4*(ks%16),4)}, {vr(X+4*((ks & ~1)+rb),4)}, {'0' if ks < 2 else d}")
                for x in (A, B)[rb]: a(x)
        assert pos >= len(ep), (pos, len(ep))
        a("v_mov_b32 v7, v8\ns_add_u32 s63, s63, 1")
    a("s_cmp_lt_u32 s63, 7\ns_cbranch_scc1 kb_loop")
    a.stamp(4)
    a("s_nop 7\ns_nop 7")
    for x in gelu_ops(ACC, TMP, OUT): a(x)
    a(st)
    a("s_waitcnt lgkmcnt(0) vmcnt(0)")
    a.stamp(5)
    a.dump(6, "kb")
    a.label("kb_exit")
    a("s_endpgm")

def gen_kc(a):
    for lay in (0, 1):
        a.raw(f".p2align 8\n.globl kc{lay}_kernel\n.type kc{lay}_kernel,@function")
        a.label(f"kc{lay}_kernel")
        a(f"s_mov_b32 s3, {lay}\ns_branch kc_body")
    a.label("kc_body")
    a.stamp(0)
    prologue(a)
    D = 7; F = 96; ACC = 16; RES = 80
    if CLAIM: claim(a, "kc", 2048, 49152)
    a("""s_cmp_ge_u32 s2, 256
    s_cbranch_scc1 kc_exit
    s_and_b32 s5, s2, 7
    s_lshl_b32 s5, s5, 2
    s_lshr_b32 s6, s2, 6
    s_add_u32 s5, s5, s6
    s_bfe_u32 s6, s2, 0x30003
    s_waitcnt lgkmcnt(0)""")
    a.stamp(1)
    srd(a, 8, 54, WS_WD, 16*112*1024); srd(a, 12, 54, WS_H, 64*112*1024); srd(a, 16, 54, WS_XP, 0x200000)
    a(f"""s_add_u32 s24, s54, 0x{WS_X2:x}
    s_addc_u32 s25, s55, 0
    s_cmp_eq_u32 s3, 0
    s_cselect_b32 s20, s24, s50
    s_cselect_b32 s21, s25, s51
    s_mov_b32 s22, 0x200000
    s_mov_b32 s23, 0x00020000
    s_and_b32 s7, s4, 1
    s_lshr_b32 s28, s4, 1
    s_lshl_b32 s29, s6, 1
    s_add_u32 s29, s29, s7
    s_lshl_b32 s30, s5, 1
    s_add_u32 s30, s30, s28
    s_xor_b32 s31, s29, 1
    s_xor_b32 s56, s30, 1
    s_mul_i32 s57, s4, 28
    s_mul_i32 s58, s29, 112
    s_add_u32 s58, s58, s57
    s_lshl_b32 s58, s58, 10
    v_lshl_add_u32 v4, v1, 4, s58
    s_mul_i32 s58, s31, 112
    s_add_u32 s58, s58, s57
    s_lshl_b32 s58, s58, 10
    v_lshl_add_u32 v5, v1, 4, s58
    s_mul_i32 s58, s30, 112
    s_add_u32 s58, s58, s57
    s_lshl_b32 s58, s58, 10
    v_lshl_add_u32 v6, v1, 4, s58
    s_mul_i32 s58, s56, 112
    s_add_u32 s58, s58, s57
    s_lshl_b32 s58, s58, 10
    v_lshl_add_u32 v7, v1, 4, s58
    v_and_b32 v8, 31, v1
    v_lshlrev_b32 v8, 6, v8
    v_add_u32 v8, s30, v8
    v_lshlrev_b32 v8, 10, v8
    v_lshrrev_b32 v9, 5, v1
    v_lshl_add_u32 v8, v9, 3, v8
    s_lshl_b32 s58, s29, 6
    v_add_u32 v8, s58, v8
    v_and_b32 v10, 31, v1
    v_lshlrev_b32 v10, 4, v10
    v_lshl_add_u32 v10, v9, 3, v10
    s_lshl_b32 s58, s30, 15
    s_lshl_b32 s59, s29, 11
    s_add_u32 s58, s58, s59
    v_add_u32 v10, s58, v10
    v_lshl_add_u32 v8, v9, 3, v8""")
    import os
    if os.environ.get("KCHACK") == "1":
        a("v_lshlrev_b32 v4, 4, v1\nv_add_u32 v5, 0x8000, v4\nv_mov_b32 v6, v4\nv_mov_b32 v7, v5")
    if os.environ.get("KCHACK") == "2":
        a("v_lshlrev_b32 v6, 4, v1\nv_add_u32 v7, 0x8000, v6")
    for q in range(4):
        a(f"buffer_load_dwordx2 {vr(RES+2*q,2)}, v10, s[16:19], 0 offen offset:{512*q}")
    def ld(ks):
        b = F + 16*(ks % D)
        for i, (v, R) in enumerate(((4, 8), (5, 8), (6, 12), (7, 12))):
            a(f"buffer_load_dwordx4 {vr(b+4*i,4)}, v{v}, s[{R}:{R+3}], s58 offen offset:{(ks%4)*1024}")
    def mm(ks):
        b = F + 16*(ks % D)
        for i, (A, B) in enumerate(((0, 2), (1, 2), (0, 3), (1, 3))):
            d = vr(ACC+16*i, 16)
            a(f"v_mfma_f32_32x32x16_bf16 {d}, {vr(b+4*A,4)}, {vr(b+4*B,4)}, {d}")
    a("s_mov_b32 s58, 0")
    for ks in range(D):
        if ks == 4: a("s_mov_b32 s58, 4096")
        ld(ks)
    for i in range(64): a(f"v_mov_b32 v{ACC+i}, 0")
    a("s_mov_b32 s59, 7168\ns_mov_b32 s60, 0")
    a.stamp(2)
    a.label("kc_loop")
    for ks in range(D):
        a(f"s_waitcnt vmcnt({4*(D-1)})")
        mm(ks)
        if ks == 0: a("s_mov_b32 s58, s59")
        if ks == 4: a("s_add_u32 s58, s59, 4096")
        ld(ks)
    a("s_add_u32 s59, s59, 7168\ns_add_u32 s60, s60, 1\ns_cmp_lt_u32 s60, 3\ns_cbranch_scc1 kc_loop")
    a.stamp(3)
    for ks in range(D):
        a(f"s_waitcnt vmcnt({4*(D-1-ks)})")
        mm(ks)
    a.stamp(6)
    a("v_lshlrev_b32 v9, 4, v1\ns_nop 7\ns_nop 7")
    for i in (1, 2, 3):
        a(f"s_xor_b32 s58, s4, {i}\ns_mul_i32 s58, s58, 12288\nv_add_u32 v10, s58, v9")
        for q in range(4):
            a(f"ds_write_b128 v10, {vr(ACC+16*i+4*q,4)} offset:{(i-1)*4096+q*1024}")
    a("s_mul_i32 s58, s4, 12288\nv_add_u32 v10, s58, v9\ns_waitcnt lgkmcnt(0)\ns_barrier")
    for i in range(3):
        for q in range(4):
            a(f"ds_read_b128 {vr(96+16*i+4*q,4)}, v10 offset:{i*4096+q*1024}")
    a("s_waitcnt lgkmcnt(0)")
    a.stamp(7)
    for q in range(4):
        for r in range(4):
            c = ACC+4*q+r
            a(f"v_add_f32 v{c}, v{c}, v{96+4*q+r}\nv_add_f32 v{112+4*q+r}, v{112+4*q+r}, v{128+4*q+r}")
            if r % 2 == 0: a(f"v_lshlrev_b32 v11, 16, v{RES+2*q+r//2}")
            else: a(f"v_and_b32 v11, 0xffff0000, v{RES+2*q+r//2}")
            a(f"v_add_f32 v{c}, v{c}, v11\nv_add_f32 v{c}, v{c}, v{112+4*q+r}")
        a(f"v_cvt_pk_bf16_f32 v{88+2*q}, v{ACC+4*q}, v{ACC+4*q+1}\nv_cvt_pk_bf16_f32 v{89+2*q}, v{ACC+4*q+2}, v{ACC+4*q+3}")
        if q % 2 == 1:
            b = 88+2*(q-1)
            a(f"s_nop 1\nv_permlane32_swap_b32 v{b}, v{b+2}\nv_permlane32_swap_b32 v{b+1}, v{b+3}")
            a(f"s_nop 1\nbuffer_store_dwordx4 v[{b}:{b+3}], v8, s[20:23], 0 offen offset:{32*(q//2)}")
    a.stamp(8)
    a.dump(9, "kc")
    a.label("kc_exit")
    a("s_endpgm")
```

```python
from gen_common import *
from gen_ka import prologue, gen_prep
def gen_ks(a):
    for lay in (0, 1):
        a.raw(f".p2align 8\n.globl ks{lay}_kernel\n.type ks{lay}_kernel,@function")
        a.label(f"ks{lay}_kernel")
        a(f"s_mov_b32 s3, {lay}\ns_branch ks_body")
    a.label("ks_body")
    a.stamp(0)
    prologue(a)
    a("""s_cmp_ge_u32 s2, 128
    s_cbranch_scc1 ks_prep
    s_and_b32 s5, s2, 7
    s_lshr_b32 s6, s2, 5
    s_lshl_b32 s6, s6, 3
    s_add_u32 s5, s5, s6
    s_bfe_u32 s6, s2, 0x10003
    s_bfe_u32 s7, s2, 0x10004
    s_sub_u32 s28, 64, s5
    s_cmp_eq_u32 s5, 0
    s_cselect_b32 s28, 32, s28
    s_cmp_eq_u32 s7, 0
    s_cselect_b32 s5, s5, s28
    s_sub_u32 s7, 64, s5
    s_and_b32 s7, s7, 63""")
    a("""v_lshrrev_b32 v4, 3, v1
    v_lshlrev_b32 v4, 9, v4
    s_lshl_b32 s28, s4, 7
    v_add_u32 v4, s28, v4
    v_and_b32 v5, 7, v1
    v_bfe_u32 v6, v1, 4, 1
    v_lshlrev_b32 v6, 1, v6
    v_xor_b32 v5, v5, v6
    v_lshl_add_u32 v8, v5, 4, v4
    v_xor_b32 v9, 64, v8
    s_lshl_b32 s30, s4, 14
    s_lshl_b32 s28, s6, 4
    v_add_u32 v10, s28, v2
    s_cmp_eq_u32 s5, 0
    s_cselect_b32 s29, 32, 31
    v_sub_u32 v11, s29, v10
    v_and_b32 v11, 31, v11
    v_lshlrev_b32 v14, 6, v10
    v_add_u32 v14, s5, v14
    v_lshlrev_b32 v14, 10, v14
    v_lshl_add_u32 v14, v3, 4, v14
    s_lshl_b32 s28, s4, 8
    v_add_u32 v14, s28, v14
    s_lshl_b32 s28, s5, 15
    s_lshl_b32 s29, s4, 13
    s_add_u32 s28, s28, s29
    s_lshl_b32 s29, s6, 8
    s_add_u32 s28, s28, s29
    v_lshlrev_b32 v15, 9, v3
    v_lshl_add_u32 v15, v2, 4, v15
    v_add_u32 v15, s28, v15
    s_waitcnt lgkmcnt(0)""")
    a.stamp(1)
    srd(a, 12, 54, WS_V, 0x200000)
    for side, sp in ((0, 5), (1, 7)):
        a(f"s_lshl_b32 s31, s{sp}, 15")
        for aa in range(8):
            a(f"s_add_u32 m0, s30, {side*8192+aa*1024}\ns_add_u32 s29, s31, {aa*4096}")
            a(f"buffer_load_dwordx4 v{8+(aa&1)}, s[12:15], s29 offen lds")
    a(f"""s_add_u32 s12, s54, 0x{WS_X2:x}
    s_addc_u32 s13, s55, 0
    s_cmp_eq_u32 s3, 0
    s_cselect_b32 s8, s32, s12
    s_cselect_b32 s9, s33, s13
    s_mov_b32 s10, 0x200000
    s_mov_b32 s11, 0x00020000""")
    for i in range(4):
        a(f"buffer_load_dwordx4 {vr(32+4*i,4)}, v14, s[8:11], 0 offen offset:{64*i}")
    srd(a, 24, 54, WS_XP, 0x200000); srd(a, 60, 54, WS_XN, 0x200000)
    a("""v_lshrrev_b32 v4, 2, v2
    v_and_b32 v5, 3, v2
    v_lshrrev_b32 v6, 1, v4
    v_and_b32 v7, 1, v3
    v_lshl_or_b32 v6, v7, 1, v6
    v_lshl_add_u32 v7, v3, 3, v4
    v_lshlrev_b32 v7, 7, v7
    v_lshl_add_u32 v7, v5, 3, v7
    v_add_u32 v7, s30, v7""")
    for tau in range(4):
        a(f"v_xor_b32 v4, {tau}, v6\nv_lshl_add_u32 v{48+tau}, v4, 5, v7")
    a("""s_movk_i32 s28, 2064
    v_mul_lo_u32 v4, v2, s28
    v_add_u32 v164, 65536, v4
    s_lshl_b32 s29, s4, 8
    v_lshl_add_u32 v5, v3, 4, s29
    v_add_u32 v165, v164, v5
    v_sub_u32 v166, v164, v5
    v_add_u32 v166, 1780, v166
    s_lshl_b32 s29, s4, 9
    v_lshl_add_u32 v5, v3, 5, s29
    v_add_u32 v167, v164, v5
    v_mov_b32 v12, 0x80008000""")
    for side in (0, 1):
        t = 10+side
        a(f"""v_lshlrev_b32 v4, 2, v3
        v_mul_lo_u32 v4, v4, v{t}
        v_and_b32 v5, 1, v{t}
        v_mul_lo_u32 v13, v5, v12""")
        for i in range(4):
            a(f"""v_and_b32 v5, 31, v4
            v_cvt_f32_u32 v5, v5
            v_mul_f32 v5, 0x3d000000, v5
            v_cos_f32 v6, v5
            v_sin_f32 v7, v5
            v_add_u32 v4, v4, v{t}
            v_cvt_pk_bf16_f32 v{52+8*side+i}, v6, v7
            v_xor_b32 v{56+8*side+i}, v13, v{52+8*side+i}""")
    for side in (0, 1):
        a(f"s_waitcnt vmcnt({12 if side == 0 else 4})")
        a.stamp(2+side)
        for tau in range(4):
            for ks in (0, 1):
                for u in (0, 1):
                    a(f"ds_read_b64_tr_b16 {vr(68+32*side+8*tau+4*ks+2*u,2)}, v{48+tau} offset:{side*8192+ks*4096+u*512}")
        for tau in range(4):
            a(f"s_waitcnt lgkmcnt({12-4*tau})")
            d = vr(132+16*side+4*tau, 4)
            for ks in (0, 1):
                a(f"v_mfma_f32_16x16x32_bf16 {d}, {vr(68+32*side+8*tau+4*ks,4)}, {vr(52+8*side+4*ks,4)}, {'0' if ks==0 else d}")
        if side == 1:
            for tau in range(4):
                a(f"ds_write_b128 v165, {vr(132+4*tau,4)} offset:{64*tau}")
    a("s_nop 3")
    for tau in range(4):
        for r in range(4):
            a(f"ds_write_b32 v166, v{148+4*tau+r} offset:{268-(16*tau+r)*4}")
    a("""s_cmp_lg_u32 s4, 0
    s_cbranch_scc1 ks_nofix
    v_cmp_gt_u32 vcc, 16, v1
    s_and_saveexec_b64 s[56:57], vcc
    v_mov_b32 v5, 0
    ds_write_b32 v164, v132 offset:1024
    ds_write_b32 v164, v5
    s_mov_b64 exec, s[56:57]""")
    a.label("ks_nofix")
    a("s_waitcnt vmcnt(0)")
    for i in range(4):
        for jj in range(4):
            x = 32+4*i+jj
            a(f"v_lshlrev_b32 v{100+8*i+2*jj}, 16, v{x}\nv_and_b32 v{101+8*i+2*jj}, 0xffff0000, v{x}")
    a("s_waitcnt lgkmcnt(0)\ns_barrier")
    a.stamp(4)
    for i in range(4):
        a(f"ds_read_b128 {vr(68+8*i,4)}, v167 offset:{128*i}\nds_read_b128 {vr(72+8*i,4)}, v167 offset:{128*i+16}")
    a("v_mov_b32 v8, 0\nv_mov_b32 v9, 0\nv_mov_b32 v10, 0\nv_mov_b32 v11, 0")
    for i in range(4):
        a(f"s_waitcnt lgkmcnt({6-2*i})")
        for e in range(8):
            y = 68+8*i+e
            a(f"v_add_f32 v{y}, v{y}, v{100+8*i+e}")
        for e in range(8):
            y = 68+8*i+e
            a(f"v_add_f32 v{8+2*(e&1)}, v{8+2*(e&1)}, v{y}\nv_fmac_f32 v{9+2*(e&1)}, v{y}, v{y}")
    a("""v_add_f32 v8, v8, v10
    v_add_f32 v9, v9, v11
    v_xor_b32 v4, 16, v1
    v_lshlrev_b32 v4, 2, v4
    v_xor_b32 v5, 32, v1
    v_lshlrev_b32 v5, 2, v5
    s_nop 0
    v_mov_b32 v10, v8
    v_mov_b32 v11, v9
    s_nop 1
    v_permlane16_swap_b32 v8, v10
    v_permlane16_swap_b32 v9, v11
    s_nop 1
    v_add_f32 v8, v8, v10
    v_add_f32 v9, v9, v11
    v_mov_b32 v10, v8
    v_mov_b32 v11, v9
    s_nop 1
    v_permlane32_swap_b32 v8, v10
    v_permlane32_swap_b32 v9, v11
    s_nop 1
    v_add_f32 v8, v8, v10
    v_add_f32 v9, v9, v11
    s_lshl_b32 s29, s4, 7
    v_lshl_add_u32 v4, v2, 3, s29
    ds_write_b64 v4, v[8:9]
    v_lshlrev_b32 v4, 3, v2""")
    for i in range(4):
        for jj in range(4):
            y = 68+8*i+2*jj
            a(f"v_cvt_pk_bf16_f32 v{32+4*i+jj}, v{y}, v{y+1}")
        if i == 2: a("v_add_u32 v15, 4096, v15")
        a(f"buffer_store_dwordx4 {vr(32+4*i,4)}, v15, s[24:27], 0 offen offset:{2048*(i%2)}")
    a("""s_waitcnt lgkmcnt(0)
    s_barrier
    ds_read_b64 v[8:9], v4
    ds_read_b64 v[10:11], v4 offset:128
    ds_read_b64 v[12:13], v4 offset:256
    ds_read_b64 v[16:17], v4 offset:384
    v_lshrrev_b32 v4, 1, v3
    v_lshlrev_b32 v4, 10, v4
    v_and_b32 v5, 1, v3
    v_lshl_add_u32 v4, v5, 9, v4
    v_lshl_add_u32 v4, v2, 4, v4
    s_lshl_b32 s28, s5, 15
    s_lshl_b32 s29, s4, 13
    s_add_u32 s28, s28, s29
    s_lshl_b32 s29, s6, 8
    s_add_u32 s28, s28, s29
    v_add_u32 v4, s28, v4
    s_waitcnt lgkmcnt(0)
    v_add_f32 v8, v8, v10
    v_add_f32 v9, v9, v11
    v_add_f32 v12, v12, v16
    v_add_f32 v13, v13, v17
    v_add_f32 v8, v8, v12
    v_add_f32 v9, v9, v13
    v_mul_f32 v8, 0x3b000000, v8
    v_mul_f32 v9, 0x3b000000, v9
    v_fma_f32 v9, -v8, v8, v9
    v_add_f32 v9, 0x3727c5ac, v9
    v_rsq_f32 v9, v9
    s_nop 0
    v_mul_f32 v8, v8, v9
    v_sub_f32 v8, 0, v8""")
    a.stamp(5)
    for i in range(4):
        for jj in range(4):
            y = 68+8*i+2*jj
            a(f"v_fma_f32 v{y}, v{y}, v9, v8\nv_fma_f32 v{y+1}, v{y+1}, v9, v8\nv_cvt_pk_bf16_f32 v{116+4*i+jj}, v{y}, v{y+1}")
        a(f"buffer_store_dwordx4 {vr(116+4*i,4)}, v4, s[60:63], 0 offen offset:{2048*i if 2048*i<4096 else 0}" if i < 2 else
          (f"v_add_u32 v4, 4096, v4\n" if i == 2 else "") + f"buffer_store_dwordx4 {vr(116+4*i,4)}, v4, s[60:63], 0 offen offset:{2048*(i-2)}")
    a.stamp(6)
    a.dump(7, "ks")
    a.label("ks_exit")
    a("s_endpgm")
    a.label("ks_prep")
    a("s_cmp_lg_u32 s3, 0\ns_cbranch_scc1 ks_exit\ns_cmp_ge_u32 s2, 240\ns_cbranch_scc1 ks_exit\ns_sub_u32 s95, s2, 128\ns_waitcnt lgkmcnt(0)")
    gen_prep(a)
    a.dump(7, "ksp")
    a("s_endpgm")
```

```python
import sys
from gen_common import *
from gen_ka import gen_ka
from gen_ks import gen_ks
from gen_kb import gen_kb, gen_kc
src = open('cdna_kernels/' + NAME + '.s.ref').read()
hdr = src[:src.index('; Override launch geometry')]
K = [("ka0", 256, 131072, 208), ("ks0", 240, 98816, 168), ("kb", 256, 131088, 256), ("kc0", 256, 49168, 208),
     ("ka1", 256, 131072, 208), ("ks1", 128, 98816, 168), ("kb", 256, 131088, 256), ("kc1", 256, 49168, 208)]
nl = int(sys.argv[2]) if len(sys.argv) > 2 else 8
out = hdr
for n, g, l, v in K[:nl]:
    out += f"; @launch kernel={n}_kernel grid=({g},1,1) block=(256,1,1) lds={l}\n"
out += '.amdgcn_target "amdgcn-amd-amdhsa--gfx950"\n.text\n'
a = Asm()
gen_ka(a); gen_ks(a); gen_kb(a); gen_kc(a)
import os, re
txt = a.text()
STF = os.environ.get("STF", "sc1")
if STF: txt = re.sub(r"(buffer_store_dword\w* .*offen[^\n]*)", lambda m: m.group(1) if "s[96:99]" in m.group(1) else m.group(1) + " " + STF, txt)
AL = os.environ.get('AL', '1')
if AL != '0':
    from align import align
    txt = align(txt, AL == '1')
out += txt
out += '.section .rodata,"a"\n'
seen = set()
for n, g, l, v in K:
    if n in seen: continue
    seen.add(n)
    out += f""".p2align 6
.amdhsa_kernel {n}_kernel
  .amdhsa_next_free_vgpr {v}
  .amdhsa_next_free_sgpr 102
  .amdhsa_accum_offset {v}
  .amdhsa_group_segment_fixed_size 0
  .amdhsa_kernarg_size 96
  .amdhsa_user_sgpr_count 2
  .amdhsa_user_sgpr_kernarg_segment_ptr 1
  .amdhsa_system_sgpr_workgroup_id_x 1
.end_amdhsa_kernel
"""
open(sys.argv[1] if len(sys.argv) > 1 else 'cdna_kernels/' + NAME + '.s', 'w').write(out)
```

```python
NAME = "interleave_layers__spectral_fnet__geglu_ffn__prompt"
WS_V, WS_XP, WS_XN, WS_H, WS_X2, WS_WA, WS_WD = 0x0, 0x200000, 0x400000, 0x600000, 0xE00000, 0x1000000, 0x1400000
import os
PROF = int(os.environ.get("PROF", "0"))
PROFWG = int(os.environ.get("PROFWG", "9"))
class Asm:
    def __init__(s):
        s.L = []
    def __call__(s, t):
        for ln in t.strip("\n").split("\n"):
            s.L.append("    " + ln.strip())
    def label(s, n):
        s.L.append(n + ":")
    def raw(s, t):
        s.L.append(t)
    def stamp(s, i):
        if PROF == 2:
            if i == 0: s("s_memrealtime s[64:65]")
        elif PROF: s(f"s_memtime s[{64+2*i}:{65+2*i}]")
    def dump(s, n, tag):
        if not PROF: return
        if PROF == 2:
            s(f"s_waitcnt lgkmcnt(0) vmcnt(0)\ns_memrealtime s[66:67]\ns_waitcnt lgkmcnt(0)\ns_cmp_lg_u32 s4, 0\ns_cbranch_scc1 nodump_{tag}")
            s("s_add_u32 s96, s54, 0x1800000\ns_addc_u32 s97, s55, 0\ns_mov_b32 s98, 0x10000\ns_mov_b32 s99, 0x00020000")
            s("s_bfe_u32 s68, s52, 0x30009\ns_lshl_b32 s68, s68, 12\ns_lshl_b32 s69, s2, 3\ns_add_u32 s68, s68, s69\nv_mov_b32 v0, s68\nv_mov_b32 v2, s64\nv_mov_b32 v3, s66\nbuffer_store_dwordx2 v[2:3], v0, s[96:99], 0 offen")
            s.label(f"nodump_{tag}")
            return
        s(f"s_waitcnt lgkmcnt(0) vmcnt(0)\ns_memtime s[{64+2*n}:{65+2*n}]\ns_waitcnt lgkmcnt(0)\ns_cmp_lg_u32 s2, {PROFWG}\ns_cbranch_scc1 nodump_{tag}\ns_cmp_lg_u32 s4, 0\ns_cbranch_scc1 nodump_{tag}")
        s("s_mov_b32 s96, s52\ns_mov_b32 s97, s53\ns_mov_b32 s98, 256\ns_mov_b32 s99, 0x00020000\nv_mov_b32 v0, 0")
        for i in range(n+1):
            s(f"v_mov_b32 v1, s{64+2*i}\nbuffer_store_dword v1, v0, s[96:99], 0 offen offset:{4*i}")
        s.label(f"nodump_{tag}")
    def text(s):
        return "\n".join(s.L) + "\n"
def vr(b, n=1):
    return f"v{b}" if n == 1 else f"v[{b}:{b+n-1}]"
def sr(b, n=1):
    return f"s{b}" if n == 1 else f"s[{b}:{b+n-1}]"
def srd(a, d, base, off, size):
    if off:
        a(f"s_add_u32 s{d}, s{base}, 0x{off:x}\ns_addc_u32 s{d+1}, s{base+1}, 0")
    else:
        a(f"s_mov_b32 s{d}, s{base}\ns_mov_b32 s{d+1}, s{base+1}")
    a(f"s_mov_b32 s{d+2}, 0x{size:x}\ns_mov_b32 s{d+3}, 0x00020000")

WS_CNT = 0x1900000
def claim(a, tag, cntoff, ldsoff, per=32):
    srd(a, 56, 54, WS_CNT + cntoff, 2048) if False else None
    a(f"""s_getreg_b32 s5, hwreg(HW_REG_XCC_ID, 0, 4)
    s_and_b32 s5, s5, 7
    v_mov_b32 v10, {ldsoff}
    s_cmp_lg_u32 s4, 0
    s_waitcnt lgkmcnt(0)
    s_cbranch_scc1 {tag}_cwait""")
    srd(a, 56, 54, WS_CNT + cntoff, 2048)
    a("s_mov_b64 exec, 1\ns_mov_b32 s6, 0")
    a.label(f"{tag}_cl")
    a(f"""s_add_u32 s7, s5, s6
    s_and_b32 s7, s7, 7
    s_lshl_b32 s2, s7, 8
    v_mov_b32 v8, s2
    v_mov_b32 v9, 1
    buffer_atomic_add v9, v8, s[56:59], 0 offen sc0 sc1
    s_waitcnt vmcnt(0)
    v_readfirstlane_b32 s2, v9
    s_cmp_lt_u32 s2, {per}
    s_cbranch_scc1 {tag}_cgot
    s_add_u32 s6, s6, 1
    s_cmp_lt_u32 s6, 8
    s_cbranch_scc1 {tag}_cl
    s_mov_b32 s2, {per}""")
    a.label(f"{tag}_cgot")
    a(f"""s_lshl_b32 s2, s2, 3
    s_add_u32 s2, s2, s7
    v_mov_b32 v9, s2
    ds_write_b32 v10, v9
    s_mov_b64 exec, -1
    s_waitcnt lgkmcnt(0)""")
    a.label(f"{tag}_cwait")
    a("""s_barrier
    ds_read_b32 v9, v10
    s_waitcnt lgkmcnt(0)
    v_readfirstlane_b32 s2, v9""")
```

```python
from gen_common import *
def prologue(a):
    a("""s_load_dwordx16 s[32:47], s[0:1], 0
    s_load_dwordx8 s[48:55], s[0:1], 64
    v_and_b32 v1, 63, v0
    v_lshrrev_b32 v4, 6, v0
    v_and_b32 v2, 15, v0
    v_bfe_u32 v3, v0, 4, 2
    v_readfirstlane_b32 s4, v4""")

def gen_ka(a):
    X, TF, ACC, SUM, SQ, CS, ONES = 64, 32, 8, 24, 28, 128, 132
    TB = 65536
    for lay in (0, 1):
        a.raw(f".p2align 8\n.globl ka{lay}_kernel\n.type ka{lay}_kernel,@function")
        a.label(f"ka{lay}_kernel")
        a(f"s_mov_b32 s3, {lay}\ns_branch ka_body")
    a.label("ka_body")
    a.stamp(0)
    prologue(a)
    a("""s_cmp_ge_u32 s2, 256
    s_cbranch_scc1 ka_exit
    s_and_b32 s5, s2, 7
    s_lshl_b32 s5, s5, 2
    s_bfe_u32 s6, s2, 0x20003
    s_add_u32 s5, s5, s6
    s_lshr_b32 s6, s2, 5
    v_and_b32 v4, 15, v1
    v_lshrrev_b32 v5, 4, v1""")
    a("""s_lshl_b32 s7, s4, 19
    s_lshl_b32 s28, s5, 10
    s_add_u32 s28, s28, s7
    s_and_b32 s7, s4, 1
    s_lshl_b32 s7, s7, 4
    s_lshl_b32 s29, s6, 5
    s_add_u32 s7, s7, s29
    v_mov_b32 v9, 0x100""")
    for i in range(4):
        a(f"""v_add_u32 v6, {4*i}, v5
        v_xor_b32 v7, v4, v6
        v_lshlrev_b32 v7, 4, v7
        v_lshl_add_u32 v{136+i}, v6, 15, v7
        v_add_u32 v{136+i}, s28, v{136+i}
        v_add_u32 v6, s7, v6
        v_cmp_eq_u32 vcc, 0, v6
        v_cndmask_b32 v6, v6, v9, vcc
        v_lshl_add_u32 v{140+i}, v6, 10, v7""")
    a("s_waitcnt lgkmcnt(0)")
    a.stamp(1)
    a("s_add_u32 s7, s2, s4\ns_cmp_lg_u32 s7, 0\ns_cbranch_scc1 ka_nozero")
    srd(a, 56, 54, WS_CNT, 4096)
    a("v_lshlrev_b32 v6, 8, v1\nv_mov_b32 v7, 0\nbuffer_store_dword v7, v6, s[56:59], 0 offen")
    a.label("ka_nozero")
    a(f"""s_add_u32 s12, s54, 0x{WS_X2:x}
    s_addc_u32 s13, s55, 0
    s_cmp_eq_u32 s3, 0
    s_cselect_b32 s8, s32, s12
    s_cselect_b32 s9, s33, s13
    s_mov_b32 s10, 0x200000
    s_mov_b32 s11, 0x00020000
    s_cmp_lt_u32 s4, 2
    s_cselect_b32 s12, s38, s40
    s_cselect_b32 s13, s39, s41
    s_mov_b32 s14, 0x80000
    s_mov_b32 s15, 0x00020000
    s_lshl_b32 s30, s4, 12""")
    def issue(kq):
        for i in range(4):
            a(f"s_add_u32 m0, s30, {TB + kq*16384 + i*1024 - kq*256}")
            a(f"s_nop 0\nbuffer_load_dwordx4 v{140+i}, s[12:15], 0 offen offset:{kq*256} lds")
            a(f"s_add_u32 m0, s30, {kq*16384 + i*1024 - kq*256}")
            a(f"s_nop 0\nbuffer_load_dwordx4 v{136+i}, s[8:11], 0 offen offset:{kq*256} lds")
    issue(0); issue(1)
    a.stamp(9)
    srd(a, 24, 54, WS_V, 0x200000)
    a("""s_lshl_b32 s7, s4, 4
    v_add_u32 v4, s7, v2
    v_lshlrev_b32 v5, 8, v3
    v_add_u32 v5, s5, v5
    v_mul_lo_u32 v5, v5, v4
    v_lshlrev_b32 v6, 5, v4
    v_and_b32 v7, 1, v4
    v_mov_b32 v8, 0x80008000
    v_mul_lo_u32 v7, v7, v8""")
    for j in range(8):
        a(f"""v_and_b32 v9, 0x7ff, v5
        v_cvt_f32_u32 v9, v9
        v_mul_f32 v9, 0x3a000000, v9
        v_cos_f32 v{10+j}, v9
        v_sin_f32 v{18+j}, v9""")
        if j < 7: a("v_add_u32 v5, v5, v6")
    for jj in range(4):
        a(f"""v_cvt_pk_bf16_f32 v{180+jj}, v{10+2*jj}, v{11+2*jj}
        v_cvt_pk_bf16_f32 v{196+jj}, v{18+2*jj}, v{19+2*jj}
        v_xor_b32 v{184+jj}, v7, v{180+jj}
        v_xor_b32 v{200+jj}, v7, v{196+jj}
        v_xor_b32 v{188+jj}, v8, v{196+jj}
        v_xor_b32 v{192+jj}, v8, v{200+jj}""")
    for jj in range(4):
        a(f"v_add_u32 v4, {4*jj}, v3\nv_xor_b32 v4, v4, v2\nv_lshlrev_b32 v4, 4, v4\nv_lshl_add_u32 v{146+jj}, v2, 8, v4")
        a(f"v_add_u32 v{150+jj}, s30, v{146+jj}")
    for i in range(4):
        a(f"s_add_u32 s7, s4, {i}\ns_and_b32 s7, s7, 3\ns_lshl_b32 s7, s7, 12\ns_add_u32 s{56+i}, s7, {TB}")
    for jj in range(4):
        for i in range(4):
            a(f"v_add_u32 v{156+4*jj+i}, s{56+i}, v{146+jj}")
    for i in range(4):
        a(f"v_mov_b32 v{ONES+i}, 0x3f803f80")
    def rd(j):
        b = TF + 16*(j & 1); kq = j >> 2; jj = j & 3
        a(f"ds_read_b128 {vr(X+4*(j&1),4)}, v{150+jj} offset:{kq*16384}")
        for i in range(4):
            a(f"ds_read_b128 {vr(b+4*i,4)}, v{156+4*jj+i} offset:{kq*16384}")
    for grp in range(4):
        a(f"s_waitcnt vmcnt({(8, 8, 8, 0)[grp]})\ns_barrier")
        a.stamp(2+grp)
        if grp < 2: issue(grp+2)
        rd(4*grp)
        for j in range(4*grp, 4*grp+4):
            if j % 4 != 3:
                rd(j+1); a("s_waitcnt lgkmcnt(5)")
            else:
                a("s_waitcnt lgkmcnt(0)")
            b = TF + 16*(j & 1); x = vr(X+4*(j&1), 4)
            c = lambda r: "0" if j == 0 else vr(r, 4)
            for i in range(4):
                a(f"v_mfma_f32_16x16x32_bf16 {vr(ACC+4*i,4)}, {vr(b+4*i,4)}, {x}, {c(ACC+4*i)}")
            a(f"v_mfma_f32_16x16x32_bf16 {vr(SUM,4)}, {vr(ONES,4)}, {x}, {c(SUM)}")
            a(f"v_mfma_f32_16x16x32_bf16 {vr(SQ,4)}, {x}, {x}, {c(SQ)}")
            a(f"v_mfma_f32_16x16x32_bf16 {vr(CS,4)}, {vr(b,4)}, {vr(ONES,4)}, {c(CS)}")
    a.stamp(6)
    a(f"""s_nop 7
    s_nop 3
    s_lshl_b32 s7, s4, 6
    v_lshl_add_u32 v4, v3, 4, s7
    v_cmp_eq_u32 vcc, 0, v2
    s_and_saveexec_b64 s[56:57], vcc
    ds_write_b128 v4, {vr(CS,4)}
    s_mov_b64 exec, s[56:57]
    v_and_b32 v5, 3, v2
    v_cmp_eq_u32 vcc, 1, v5
    v_cndmask_b32 v6, v{SQ}, v{SQ+1}, vcc
    v_cmp_eq_u32 vcc, 2, v5
    v_cndmask_b32 v6, v6, v{SQ+2}, vcc
    v_cmp_eq_u32 vcc, 3, v5
    v_cndmask_b32 v6, v6, v{SQ+3}, vcc
    v_lshrrev_b32 v5, 2, v2
    v_lshl_add_u32 v5, v5, 4, v2
    v_lshlrev_b32 v5, 2, v5
    ds_bpermute_b32 v6, v5, v6
    v_mul_f32 v7, 0x3b000000, v{SUM}
    s_waitcnt lgkmcnt(0)
    s_barrier
    v_mul_f32 v6, 0x3b000000, v6
    v_fma_f32 v6, -v7, v7, v6
    v_add_f32 v6, 0x3727c5ac, v6
    v_rsq_f32 v6, v6""")
    for i in range(4):
        a(f"s_add_u32 s7, s4, {i}\ns_and_b32 s7, s7, 3\ns_lshl_b32 s28, s7, 6\nv_lshl_add_u32 v4, v3, 4, s28")
        a(f"ds_read_b128 {vr(TF+4*i,4)}, v4")
        if i == 0:
            a("""v_bfe_u32 v144, v2, 1, 1
            v_bfe_u32 v145, v2, 3, 1
            v_lshl_or_b32 v144, v145, 1, v144
            s_lshl_b32 s29, s4, 4
            v_add_u32 v145, s29, v2
            v_lshlrev_b32 v145, 7, v145
            v_lshl_add_u32 v145, v3, 3, v145
            v_add_u32 v145, 1024, v145""")
        a(f"v_xor_b32 v5, s7, v144\nv_lshl_add_u32 v{146+i}, v5, 5, v145")
    a("v_sub_f32 v7, 0, v7\ns_waitcnt lgkmcnt(0)")
    for i in range(4):
        for r in range(4):
            a(f"v_fma_f32 v{ACC+4*i+r}, v7, v{TF+4*i+r}, v{ACC+4*i+r}")
            a(f"v_mul_f32 v{ACC+4*i+r}, v6, v{ACC+4*i+r}")
        a(f"v_cvt_pk_bf16_f32 v{ACC+4*i}, v{ACC+4*i}, v{ACC+4*i+1}")
        a(f"v_cvt_pk_bf16_f32 v{ACC+4*i+1}, v{ACC+4*i+2}, v{ACC+4*i+3}")
        a(f"ds_write_b64 v{146+i}, {vr(ACC+4*i,2)}")
    a("""v_lshrrev_b32 v4, 2, v2
    v_and_b32 v5, 3, v2
    v_lshrrev_b32 v6, 1, v4
    v_and_b32 v7, 1, v3
    v_lshl_or_b32 v6, v7, 1, v6
    v_lshl_add_u32 v7, v3, 3, v4
    v_lshlrev_b32 v7, 7, v7
    v_lshrrev_b32 v150, 1, v5
    v_xor_b32 v150, v150, v6
    v_and_b32 v151, 1, v5
    v_lshlrev_b32 v151, 4, v151
    v_add_u32 v151, v151, v7
    v_add_u32 v151, 1024, v151
    v_lshl_add_u32 v152, v150, 5, v151
    v_xor_b32 v150, 2, v150
    v_lshl_add_u32 v153, v150, 5, v151
    s_waitcnt lgkmcnt(0)
    s_barrier""")
    a.stamp(7)
    for cc in (0, 1):
        for st in (0, 1):
            for kap in (0, 1):
                for u in (0, 1):
                    a(f"ds_read_b64_tr_b16 {vr(64+16*cc+8*st+4*kap+2*u,2)}, v{152+cc} offset:{kap*4096+u*512+st*8}")
    a("s_waitcnt lgkmcnt(0)")
    for st in (0, 1):
        for out in (0, 1):
            d = vr(96+8*out+4*st, 4)
            first = True
            for kap in (0, 1):
                A1 = vr(64+16*out+8*st+4*kap, 4)
                A2 = vr(64+16*(1-out)+8*st+4*kap, 4)
                B2 = vr((196 if out == 0 else 188)+4*kap, 4)
                a(f"v_mfma_f32_16x16x32_bf16 {d}, {A1}, {vr(180+4*kap,4)}, {'0' if first else d}")
                a(f"v_mfma_f32_16x16x32_bf16 {d}, {A2}, {B2}, {d}")
                first = False
    a("""s_lshl_b32 s7, s4, 4
    v_add_u32 v4, s7, v2
    v_lshlrev_b32 v4, 15, v4
    v_lshl_add_u32 v4, v3, 4, v4
    s_lshl_b32 s28, s5, 10
    s_lshl_b32 s29, s6, 6
    s_add_u32 s28, s28, s29
    v_add_u32 v4, s28, v4
    s_waitcnt vmcnt(0)
    s_nop 7""")
    for out in (0, 1):
        b = 96+8*out
        a(f"""v_cvt_pk_bf16_f32 v{b}, v{b}, v{b+1}
        v_cvt_pk_bf16_f32 v{b+1}, v{b+2}, v{b+3}
        v_cvt_pk_bf16_f32 v{b+2}, v{b+4}, v{b+5}
        v_cvt_pk_bf16_f32 v{b+3}, v{b+6}, v{b+7}
        buffer_store_dwordx4 {vr(b,4)}, v4, s[24:27], 0 offen offset:{out*512}""")
    a.stamp(8)
    a.label("ka_done")
    a.dump(12, "ka")
    a.label("ka_exit")
    a("s_endpgm")


def gen_prep(a):
    srd(a, 40, 44, 0, 512*1792*2); srd(a, 44, 46, 0, 512*1792*2); srd(a, 60, 48, 0, 1792*512*2)
    srd(a, 8, 54, WS_WA, 112*32768); srd(a, 12, 54, WS_WD, 16*112*1024)
    a("""v_and_b32 v6, 7, v1
    v_bfe_u32 v7, v1, 4, 1
    v_lshlrev_b32 v7, 1, v7
    v_xor_b32 v20, v6, v7
    s_lshl_b32 s31, s4, 11""")
    for j in (0, 1):
        a(f"""s_add_u32 s7, s95, {112*j}
        s_lshr_b32 s28, s7, 3
        s_and_b32 s29, s7, 7
        v_lshrrev_b32 v5, 3, v1
        s_lshl_b32 s7, s4, 4
        v_add_u32 v5, s7, v5
        s_lshl_b32 s7, s29, 6
        v_add_u32 v4, s7, v5
        s_movk_i32 s7, 3584
        v_mul_lo_u32 v4, v4, s7
        s_lshl_b32 s7, s28, 7
        v_add_u32 v4, s7, v4
        v_lshl_add_u32 v22, v20, 4, v4
        v_xor_b32 v23, 64, v22
        v_add_u32 v23, 28672, v23
        s_lshl_b32 s7, s28, 6
        v_add_u32 v4, s7, v5
        v_lshlrev_b32 v4, 10, v4
        s_lshl_b32 s7, s29, 7
        v_add_u32 v4, s7, v4
        v_lshl_add_u32 v24, v20, 4, v4
        v_xor_b32 v25, 64, v24
        v_add_u32 v25, 8192, v25""")
        for mi, (R, v) in enumerate(((40, 22), (44, 22), (60, 24))):
            for aa in (0, 1):
                a(f"s_add_u32 m0, s31, {j*24576 + mi*8192 + aa*1024}\ns_nop 0")
                a(f"buffer_load_dwordx4 v{v+aa}, s[{R}:{R+3}], 0 offen lds")
    a("""v_lshrrev_b32 v4, 2, v2
    v_and_b32 v5, 3, v2
    v_lshrrev_b32 v6, 5, v1
    v_bfe_u32 v7, v1, 4, 1
    v_lshrrev_b32 v8, 1, v4
    v_lshl_or_b32 v9, v6, 1, v8
    s_lshl_b32 s7, s4, 4
    v_lshl_add_u32 v10, v6, 3, v4
    v_add_u32 v10, s7, v10
    v_lshlrev_b32 v10, 7, v10
    v_lshl_add_u32 v10, v5, 3, v10
    v_lshl_add_u32 v10, v7, 13, v10
    v_lshl_add_u32 v11, v6, 2, v4
    v_add_u32 v11, s7, v11
    v_lshlrev_b32 v11, 7, v11
    v_lshl_add_u32 v11, v5, 3, v11
    v_add_u32 v11, 16384, v11""")
    for j in (0, 1):
        a(f"s_waitcnt vmcnt({6 if j == 0 else 0})")
        for b in range(4):
            a(f"v_xor_b32 v12, {b}, v9\nv_lshl_add_u32 v12, v12, 5, v10")
            for u in (0, 1): a(f"ds_read_b64_tr_b16 {vr(32+4*b+2*u,2)}, v12 offset:{j*24576+u*512}")
        for aa in (0, 1):
            for u in (0, 1):
                a(f"v_lshl_or_b32 v12, {u}, 1, v8\nv_or_b32 v13, {2*aa}, v7\nv_xor_b32 v12, v12, v13\nv_lshl_add_u32 v12, v12, 5, v11")
                a(f"ds_read_b64_tr_b16 {vr(48+4*aa+2*u,2)}, v12 offset:{j*24576+u*1024}")
        a(f"""s_add_u32 s7, s95, {112*j}
        s_lshr_b32 s28, s7, 3
        s_and_b32 s29, s7, 7
        s_lshl_b32 s7, s28, 7
        s_lshl_b32 s30, s29, 2
        s_add_u32 s7, s7, s30
        s_add_u32 s7, s7, s4
        s_lshl_b32 s7, s7, 10
        v_lshl_add_u32 v14, v1, 4, s7
        s_mul_i32 s7, s29, 224
        s_lshl_b32 s30, s28, 2
        s_add_u32 s7, s7, s30
        s_add_u32 s7, s7, s4
        s_lshl_b32 s7, s7, 10
        v_lshl_add_u32 v15, v1, 4, s7
        s_waitcnt lgkmcnt(0)""")
        for b in range(4):
            a(f"s_mov_b32 s7, {b*32768}\nbuffer_store_dwordx4 {vr(32+4*b,4)}, v14, s[8:11], s7 offen")
        for aa in (0, 1):
            a(f"s_mov_b32 s7, {aa*112*1024}\nbuffer_store_dwordx4 {vr(48+4*aa,4)}, v15, s[12:15], s7 offen")
        if j == 0: a("s_nop 1")
```

```python
from gen_common import *
def prologue(a):
    a("""s_load_dwordx16 s[32:47], s[0:1], 0
    s_load_dwordx8 s[48:55], s[0:1], 64
    v_and_b32 v1, 63, v0
    v_lshrrev_b32 v4, 6, v0
    v_and_b32 v2, 15, v0
    v_bfe_u32 v3, v0, 4, 2
    v_readfirstlane_b32 s4, v4""")

def gen_ka(a):
    X, TF, ACC, SUM, SQ, CS, ONES = 64, 32, 8, 24, 28, 128, 132
    TB = 65536
    for lay in (0, 1):
        a.raw(f".p2align 8\n.globl ka{lay}_kernel\n.type ka{lay}_kernel,@function")
        a.label(f"ka{lay}_kernel")
        a(f"s_mov_b32 s3, {lay}\ns_branch ka_body")
    a.label("ka_body")
    a.stamp(0)
    prologue(a)
    if int(os.environ.get("PF", "1")) >= 1:
        a("s_cmp_ge_u32 s2, 32\ns_cbranch_scc1 ka_nopf0\ns_cmp_lg_u32 s3, 0\ns_cbranch_scc1 ka_nopf0\ns_getpc_b64 s[56:57]")
        a.label("ka_pc0")
        a("""s_mov_b32 s58, ks0_kernel-ka_pc0
        s_mov_b32 s59, 0x00020000
        s_lshl_b32 s7, s4, 11
        v_lshl_add_u32 v4, v1, 4, s7
        buffer_load_dwordx4 v[204:207], v4, s[56:59], 0 offen
        buffer_load_dwordx4 v[204:207], v4, s[56:59], 0 offen offset:1024""")
        a.label("ka_nopf0")
    a("""s_cmp_ge_u32 s2, 256
    s_cbranch_scc1 ka_exit
    s_and_b32 s5, s2, 7
    s_lshl_b32 s5, s5, 2
    s_bfe_u32 s6, s2, 0x20003
    s_add_u32 s5, s5, s6
    s_lshr_b32 s6, s2, 5
    v_and_b32 v4, 15, v1
    v_lshrrev_b32 v5, 4, v1""")
    a("""s_lshl_b32 s7, s4, 19
    s_lshl_b32 s28, s5, 10
    s_add_u32 s28, s28, s7
    s_and_b32 s7, s4, 1
    s_lshl_b32 s7, s7, 4
    s_lshl_b32 s29, s6, 5
    s_add_u32 s7, s7, s29
    v_mov_b32 v9, 0x100""")
    for i in range(4):
        a(f"""v_add_u32 v6, {4*i}, v5
        v_xor_b32 v7, v4, v6
        v_lshlrev_b32 v7, 4, v7
        v_lshl_add_u32 v{136+i}, v6, 15, v7
        v_add_u32 v{136+i}, s28, v{136+i}
        v_add_u32 v6, s7, v6
        v_cmp_eq_u32 vcc, 0, v6
        v_cndmask_b32 v6, v6, v9, vcc
        v_lshl_add_u32 v{140+i}, v6, 10, v7""")
    a("s_waitcnt lgkmcnt(0)")
    a.stamp(1)
    if int(os.environ.get('CLAIM', '0')):
        a("s_add_u32 s7, s2, s4\ns_cmp_lg_u32 s7, 0\ns_cbranch_scc1 ka_nozero")
        srd(a, 56, 54, WS_CNT, 4096)
        a("v_lshlrev_b32 v6, 8, v1\nv_mov_b32 v7, 0\nbuffer_store_dword v7, v6, s[56:59], 0 offen")
        a.label("ka_nozero")
    a(f"""s_add_u32 s12, s54, 0x{WS_X2:x}
    s_addc_u32 s13, s55, 0
    s_cmp_eq_u32 s3, 0
    s_cselect_b32 s8, s32, s12
    s_cselect_b32 s9, s33, s13
    s_mov_b32 s10, 0x200000
    s_mov_b32 s11, 0x00020000
    s_cmp_lt_u32 s4, 2
    s_cselect_b32 s12, s38, s40
    s_cselect_b32 s13, s39, s41
    s_mov_b32 s14, 0x80000
    s_mov_b32 s15, 0x00020000
    s_lshl_b32 s30, s4, 12""")
    def issue(kq):
        for i in range(4):
            a(f"s_add_u32 m0, s30, {TB + kq*16384 + i*1024 - kq*256}")
            a(f"s_nop 0\nbuffer_load_dwordx4 v{140+i}, s[12:15], 0 offen offset:{kq*256} lds")
            a(f"s_add_u32 m0, s30, {kq*16384 + i*1024 - kq*256}")
            a(f"s_nop 0\nbuffer_load_dwordx4 v{136+i}, s[8:11], 0 offen offset:{kq*256} lds")
    issue(0); issue(1)
    srd(a, 60, 48, 0, 1792*512*2)
    a("""s_cmp_lt_u32 s2, 224
    s_cselect_b32 s7, 1, 0
    s_cmp_eq_u32 s3, 0
    s_cselect_b32 s94, s7, 0
    s_cmp_eq_u32 s94, 0
    s_cselect_b32 s62, 0, s62
    v_and_b32 v6, 7, v1
    v_bfe_u32 v7, v1, 4, 1
    v_lshlrev_b32 v7, 1, v7
    v_xor_b32 v6, v6, v7
    s_lshr_b32 s28, s2, 3
    s_and_b32 s29, s2, 7
    v_lshrrev_b32 v5, 3, v1
    s_lshl_b32 s7, s4, 4
    v_add_u32 v5, s7, v5
    s_lshl_b32 s7, s28, 6
    v_add_u32 v4, s7, v5
    v_lshlrev_b32 v4, 10, v4
    s_lshl_b32 s7, s29, 7
    v_add_u32 v4, s7, v4
    v_lshl_add_u32 v172, v6, 4, v4
    v_xor_b32 v173, 64, v172
    v_add_u32 v173, 8192, v173
    s_lshl_b32 s31, s4, 11
    s_add_u32 m0, s31, 131072
    s_nop 0
    buffer_load_dwordx4 v172, s[60:63], 0 offen lds
    s_add_u32 m0, s31, 132096
    s_nop 0
    buffer_load_dwordx4 v173, s[60:63], 0 offen lds""")
    if int(os.environ.get("PF", "1")):
        a("s_cmp_lt_u32 s2, 224\ns_cbranch_scc1 ka_nopf\ns_cmp_lg_u32 s3, 0\ns_cbranch_scc1 ka_nopf\ns_getpc_b64 s[56:57]")
        a.label("ka_pc")
        a("""s_add_u32 s56, s56, ks0_kernel-ka_pc
        s_addc_u32 s57, s57, 0
        s_mov_b32 s58, text_end-ks0_kernel
        s_mov_b32 s59, 0x00020000
        s_mul_i32 s7, s4, 5120
        v_lshl_add_u32 v4, v1, 4, s7""")
        for i in range(5):
            a(f"buffer_load_dwordx4 v[204:207], v4, s[56:59], 0 offen offset:{(i%4)*1024}" if i < 4 else "v_add_u32 v4, 4096, v4\nbuffer_load_dwordx4 v[204:207], v4, s[56:59], 0 offen")
        a.label("ka_nopf")
    a.stamp(9)
    srd(a, 24, 54, WS_V, 0x200000)
    a("""s_lshl_b32 s7, s4, 4
    v_add_u32 v4, s7, v2
    v_lshlrev_b32 v5, 8, v3
    v_add_u32 v5, s5, v5
    v_mul_lo_u32 v5, v5, v4
    v_lshlrev_b32 v6, 5, v4
    v_and_b32 v7, 1, v4
    v_mov_b32 v8, 0x80008000
    v_mul_lo_u32 v7, v7, v8""")
    for j in range(8):
        a(f"""v_and_b32 v9, 0x7ff, v5
        v_cvt_f32_u32 v9, v9
        v_mul_f32 v9, 0x3a000000, v9
        v_cos_f32 v{10+j}, v9
        v_sin_f32 v{18+j}, v9""")
        if j < 7: a("v_add_u32 v5, v5, v6")
    for jj in range(4):
        a(f"""v_cvt_pk_bf16_f32 v{180+jj}, v{10+2*jj}, v{11+2*jj}
        v_cvt_pk_bf16_f32 v{196+jj}, v{18+2*jj}, v{19+2*jj}
        v_xor_b32 v{184+jj}, v7, v{180+jj}
        v_xor_b32 v{200+jj}, v7, v{196+jj}
        v_xor_b32 v{188+jj}, v8, v{196+jj}
        v_xor_b32 v{192+jj}, v8, v{200+jj}""")
    for jj in range(4):
        a(f"v_add_u32 v4, {4*jj}, v3\nv_xor_b32 v4, v4, v2\nv_lshlrev_b32 v4, 4, v4\nv_lshl_add_u32 v{146+jj}, v2, 8, v4")
        a(f"v_add_u32 v{150+jj}, s30, v{146+jj}")
    for i in range(4):
        a(f"s_add_u32 s7, s4, {i}\ns_and_b32 s7, s7, 3\ns_lshl_b32 s7, s7, 12\ns_add_u32 s{56+i}, s7, {TB}")
    for jj in range(4):
        for i in range(4):
            a(f"v_add_u32 v{156+4*jj+i}, s{56+i}, v{146+jj}")
    for i in range(4):
        a(f"v_mov_b32 v{ONES+i}, 0x3f803f80")
    def rd(j):
        b = TF + 16*(j & 1); kq = j >> 2; jj = j & 3
        a(f"ds_read_b128 {vr(X+4*(j&1),4)}, v{150+jj} offset:{kq*16384}")
        for i in range(4):
            a(f"ds_read_b128 {vr(b+4*i,4)}, v{156+4*jj+i} offset:{kq*16384}")
    for grp in range(4):
        a(f"s_waitcnt vmcnt({(10, 8, 8, 0)[grp]})\ns_barrier")
        a.stamp(2+grp)
        if grp < 2: issue(grp+2)
        if grp == 1:
            a("s_cmp_eq_u32 s94, 0\ns_cbranch_scc1 ka_nowd")
            srd(a, 60, 54, WS_WD, 16*112*1024)
            a("""v_lshrrev_b32 v4, 2, v2
            v_and_b32 v5, 3, v2
            v_lshrrev_b32 v6, 5, v1
            v_bfe_u32 v7, v1, 4, 1
            v_lshrrev_b32 v172, 1, v4
            s_lshl_b32 s7, s4, 4
            v_lshl_add_u32 v173, v6, 2, v4
            v_add_u32 v173, s7, v173
            v_lshlrev_b32 v173, 7, v173
            v_lshl_add_u32 v173, v5, 3, v173
            v_add_u32 v173, 131072, v173""")
            for aa in (0, 1):
                for u in (0, 1):
                    a(f"v_lshl_or_b32 v4, {u}, 1, v172\nv_or_b32 v5, {2*aa}, v7\nv_xor_b32 v4, v4, v5\nv_lshl_add_u32 v4, v4, 5, v173")
                    a(f"ds_read_b64_tr_b16 {vr(204+4*aa+2*u,2)}, v4 offset:{u*1024}")
            a("""s_lshr_b32 s28, s2, 3
            s_and_b32 s29, s2, 7
            s_mul_i32 s7, s29, 224
            s_lshl_b32 s28, s28, 2
            s_add_u32 s7, s7, s28
            s_add_u32 s7, s7, s4
            s_lshl_b32 s7, s7, 10
            v_lshl_add_u32 v174, v1, 4, s7
            s_waitcnt lgkmcnt(0)""")
            for aa in (0, 1):
                a(f"s_mov_b32 s7, {aa*112*1024}\nbuffer_store_dwordx4 {vr(204+4*aa,4)}, v174, s[60:63], s7 offen")
            a.label("ka_nowd")
        rd(4*grp)
        for j in range(4*grp, 4*grp+4):
            if j % 4 != 3:
                rd(j+1); a("s_waitcnt lgkmcnt(5)")
            else:
                a("s_waitcnt lgkmcnt(0)")
            b = TF + 16*(j & 1); x = vr(X+4*(j&1), 4)
            c = lambda r: "0" if j == 0 else vr(r, 4)
            for i in range(4):
                a(f"v_mfma_f32_16x16x32_bf16 {vr(ACC+4*i,4)}, {vr(b+4*i,4)}, {x}, {c(ACC+4*i)}")
            a(f"v_mfma_f32_16x16x32_bf16 {vr(SUM,4)}, {vr(ONES,4)}, {x}, {c(SUM)}")
            a(f"v_mfma_f32_16x16x32_bf16 {vr(SQ,4)}, {x}, {x}, {c(SQ)}")
            a(f"v_mfma_f32_16x16x32_bf16 {vr(CS,4)}, {vr(b,4)}, {vr(ONES,4)}, {c(CS)}")
    a.stamp(6)
    a(f"""s_nop 7
    s_nop 3
    s_lshl_b32 s7, s4, 6
    v_lshl_add_u32 v4, v3, 4, s7
    v_cmp_eq_u32 vcc, 0, v2
    s_and_saveexec_b64 s[56:57], vcc
    ds_write_b128 v4, {vr(CS,4)}
    s_mov_b64 exec, s[56:57]
    v_and_b32 v5, 3, v2
    v_cmp_eq_u32 vcc, 1, v5
    v_cndmask_b32 v6, v{SQ}, v{SQ+1}, vcc
    v_cmp_eq_u32 vcc, 2, v5
    v_cndmask_b32 v6, v6, v{SQ+2}, vcc
    v_cmp_eq_u32 vcc, 3, v5
    v_cndmask_b32 v6, v6, v{SQ+3}, vcc
    v_lshrrev_b32 v5, 2, v2
    v_lshl_add_u32 v5, v5, 4, v2
    v_lshlrev_b32 v5, 2, v5
    ds_bpermute_b32 v6, v5, v6
    v_mul_f32 v7, 0x3b000000, v{SUM}
    s_waitcnt lgkmcnt(0)
    s_barrier
    v_mul_f32 v6, 0x3b000000, v6
    v_fma_f32 v6, -v7, v7, v6
    v_add_f32 v6, 0x3727c5ac, v6
    v_rsq_f32 v6, v6""")
    for i in range(4):
        a(f"s_add_u32 s7, s4, {i}\ns_and_b32 s7, s7, 3\ns_lshl_b32 s28, s7, 6\nv_lshl_add_u32 v4, v3, 4, s28")
        a(f"ds_read_b128 {vr(TF+4*i,4)}, v4")
        if i == 0:
            a("""v_bfe_u32 v144, v2, 1, 1
            v_bfe_u32 v145, v2, 3, 1
            v_lshl_or_b32 v144, v145, 1, v144
            s_lshl_b32 s29, s4, 4
            v_add_u32 v145, s29, v2
            v_lshlrev_b32 v145, 7, v145
            v_lshl_add_u32 v145, v3, 3, v145
            v_add_u32 v145, 1024, v145""")
        a(f"v_xor_b32 v5, s7, v144\nv_lshl_add_u32 v{146+i}, v5, 5, v145")
    a("v_sub_f32 v7, 0, v7\ns_waitcnt lgkmcnt(0)")
    for i in range(4):
        for r in range(4):
            a(f"v_fma_f32 v{ACC+4*i+r}, v7, v{TF+4*i+r}, v{ACC+4*i+r}")
            a(f"v_mul_f32 v{ACC+4*i+r}, v6, v{ACC+4*i+r}")
        a(f"v_cvt_pk_bf16_f32 v{ACC+4*i}, v{ACC+4*i}, v{ACC+4*i+1}")
        a(f"v_cvt_pk_bf16_f32 v{ACC+4*i+1}, v{ACC+4*i+2}, v{ACC+4*i+3}")
        a(f"ds_write_b64 v{146+i}, {vr(ACC+4*i,2)}")
    a("""v_lshrrev_b32 v4, 2, v2
    v_and_b32 v5, 3, v2
    v_lshrrev_b32 v6, 1, v4
    v_and_b32 v7, 1, v3
    v_lshl_or_b32 v6, v7, 1, v6
    v_lshl_add_u32 v7, v3, 3, v4
    v_lshlrev_b32 v7, 7, v7
    v_lshrrev_b32 v150, 1, v5
    v_xor_b32 v150, v150, v6
    v_and_b32 v151, 1, v5
    v_lshlrev_b32 v151, 4, v151
    v_add_u32 v151, v151, v7
    v_add_u32 v151, 1024, v151
    v_lshl_add_u32 v152, v150, 5, v151
    v_xor_b32 v150, 2, v150
    v_lshl_add_u32 v153, v150, 5, v151
    s_waitcnt lgkmcnt(0)
    s_barrier""")
    a.stamp(7)
    for cc in (0, 1):
        for st in (0, 1):
            for kap in (0, 1):
                for u in (0, 1):
                    a(f"ds_read_b64_tr_b16 {vr(64+16*cc+8*st+4*kap+2*u,2)}, v{152+cc} offset:{kap*4096+u*512+st*8}")
    a("s_waitcnt lgkmcnt(0)")
    for st in (0, 1):
        for out in (0, 1):
            d = vr(96+8*out+4*st, 4)
            first = True
            for kap in (0, 1):
                A1 = vr(64+16*out+8*st+4*kap, 4)
                A2 = vr(64+16*(1-out)+8*st+4*kap, 4)
                B2 = vr((196 if out == 0 else 188)+4*kap, 4)
                a(f"v_mfma_f32_16x16x32_bf16 {d}, {A1}, {vr(180+4*kap,4)}, {'0' if first else d}")
                a(f"v_mfma_f32_16x16x32_bf16 {d}, {A2}, {B2}, {d}")
                first = False
    a("""s_lshl_b32 s7, s4, 4
    v_add_u32 v4, s7, v2
    v_lshlrev_b32 v4, 15, v4
    v_lshl_add_u32 v4, v3, 4, v4
    s_lshl_b32 s28, s5, 10
    s_lshl_b32 s29, s6, 6
    s_add_u32 s28, s28, s29
    v_add_u32 v4, s28, v4
    s_waitcnt vmcnt(0)
    s_nop 7""")
    for out in (0, 1):
        b = 96+8*out
        a(f"""v_cvt_pk_bf16_f32 v{b}, v{b}, v{b+1}
        v_cvt_pk_bf16_f32 v{b+1}, v{b+2}, v{b+3}
        v_cvt_pk_bf16_f32 v{b+2}, v{b+4}, v{b+5}
        v_cvt_pk_bf16_f32 v{b+3}, v{b+6}, v{b+7}
        buffer_store_dwordx4 {vr(b,4)}, v4, s[24:27], 0 offen offset:{out*512}""")
    a.stamp(8)
    a.label("ka_done")
    a.dump(12, "ka")
    a.label("ka_exit")
    a("s_endpgm")


def gen_prep(a):
    srd(a, 40, 44, 0, 512*1792*2); srd(a, 44, 46, 0, 512*1792*2); srd(a, 60, 48, 0, 1792*512*2)
    srd(a, 8, 54, WS_WA, 112*32768); srd(a, 12, 54, WS_WD, 16*112*1024)
    a("""v_and_b32 v6, 7, v1
    v_bfe_u32 v7, v1, 4, 1
    v_lshlrev_b32 v7, 1, v7
    v_xor_b32 v20, v6, v7
    s_lshl_b32 s31, s4, 11""")
    for j in (0, 1):
        a(f"""s_add_u32 s7, s95, {112*j}
        s_lshr_b32 s28, s7, 3
        s_and_b32 s29, s7, 7
        v_lshrrev_b32 v5, 3, v1
        s_lshl_b32 s7, s4, 4
        v_add_u32 v5, s7, v5
        s_lshl_b32 s7, s29, 6
        v_add_u32 v4, s7, v5
        s_movk_i32 s7, 3584
        v_mul_lo_u32 v4, v4, s7
        s_lshl_b32 s7, s28, 7
        v_add_u32 v4, s7, v4
        v_lshl_add_u32 v22, v20, 4, v4
        v_xor_b32 v23, 64, v22
        v_add_u32 v23, 28672, v23
        s_lshl_b32 s7, s28, 6
        v_add_u32 v4, s7, v5
        v_lshlrev_b32 v4, 10, v4
        s_lshl_b32 s7, s29, 7
        v_add_u32 v4, s7, v4
        v_lshl_add_u32 v24, v20, 4, v4
        v_xor_b32 v25, 64, v24
        v_add_u32 v25, 8192, v25""")
        for mi, (R, v) in enumerate(((40, 22), (44, 22))):
            for aa in (0, 1):
                a(f"s_add_u32 m0, s31, {j*24576 + mi*8192 + aa*1024}\ns_nop 0")
                a(f"buffer_load_dwordx4 v{v+aa}, s[{R}:{R+3}], 0 offen lds")
    a("""v_lshrrev_b32 v4, 2, v2
    v_and_b32 v5, 3, v2
    v_lshrrev_b32 v6, 5, v1
    v_bfe_u32 v7, v1, 4, 1
    v_lshrrev_b32 v8, 1, v4
    v_lshl_or_b32 v9, v6, 1, v8
    s_lshl_b32 s7, s4, 4
    v_lshl_add_u32 v10, v6, 3, v4
    v_add_u32 v10, s7, v10
    v_lshlrev_b32 v10, 7, v10
    v_lshl_add_u32 v10, v5, 3, v10
    v_lshl_add_u32 v10, v7, 13, v10
    v_lshl_add_u32 v11, v6, 2, v4
    v_add_u32 v11, s7, v11
    v_lshlrev_b32 v11, 7, v11
    v_lshl_add_u32 v11, v5, 3, v11
    v_add_u32 v11, 16384, v11""")
    for j in (0, 1):
        a(f"s_waitcnt vmcnt({4 if j == 0 else 0})")
        for b in range(4):
            a(f"v_xor_b32 v12, {b}, v9\nv_lshl_add_u32 v12, v12, 5, v10")
            for u in (0, 1): a(f"ds_read_b64_tr_b16 {vr(32+4*b+2*u,2)}, v12 offset:{j*24576+u*512}")
        a(f"""s_add_u32 s7, s95, {112*j}
        s_lshr_b32 s28, s7, 3
        s_and_b32 s29, s7, 7
        s_lshl_b32 s7, s28, 7
        s_lshl_b32 s30, s29, 2
        s_add_u32 s7, s7, s30
        s_add_u32 s7, s7, s4
        s_lshl_b32 s7, s7, 10
        v_lshl_add_u32 v14, v1, 4, s7
        s_mul_i32 s7, s29, 224
        s_lshl_b32 s30, s28, 2
        s_add_u32 s7, s7, s30
        s_add_u32 s7, s7, s4
        s_lshl_b32 s7, s7, 10
        v_lshl_add_u32 v15, v1, 4, s7
        s_waitcnt lgkmcnt(0)""")
        for b in range(4):
            a(f"s_mov_b32 s7, {b*32768}\nbuffer_store_dwordx4 {vr(32+4*b,4)}, v14, s[8:11], s7 offen")
        if j == 0: a("s_nop 1")
```

```python
import sys
from gen_common import *
from gen_ka import gen_ka
from gen_ks import gen_ks
from gen_kb import gen_kb, gen_kc
src = open('cdna_kernels/' + NAME + '.s.ref').read()
hdr = src[:src.index('; Override launch geometry')]
K = [("ka0", 256, 139264, 212), ("ks0", 240, 98816, 168), ("kb", 256, 131072, 256), ("kc0", 256, 49152, 208),
     ("ka1", 256, 139264, 212), ("ks1", 128, 98816, 168), ("kb", 256, 131072, 256), ("kc1", 256, 49152, 208)]
nl = int(sys.argv[2]) if len(sys.argv) > 2 else 8
out = hdr
for n, g, l, v in K[:nl]:
    out += f"; @launch kernel={n}_kernel grid=({g},1,1) block=(256,1,1) lds={l}\n"
out += '.amdgcn_target "amdgcn-amd-amdhsa--gfx950"\n.text\n'
a = Asm()
gen_ka(a); gen_ks(a); gen_kb(a); gen_kc(a)
import os, re
txt = a.text()
STF = os.environ.get("STF", "sc1")
if STF: txt = re.sub(r"(buffer_store_dword\w* .*offen[^\n]*)", lambda m: m.group(1) if ("s[96:99]" in m.group(1) or (os.environ.get("WDP") and "v174" in m.group(1))) else m.group(1) + " " + STF, txt)
AL = os.environ.get('AL', '1')
if AL != '0':
    from align import align
    txt = align(txt, AL == '1')
out += txt + 'text_end:\n'
out += '.section .rodata,"a"\n'
seen = set()
for n, g, l, v in K:
    if n in seen: continue
    seen.add(n)
    out += f""".p2align 6
.amdhsa_kernel {n}_kernel
  .amdhsa_next_free_vgpr {v}
  .amdhsa_next_free_sgpr 102
  .amdhsa_accum_offset {v}
  .amdhsa_group_segment_fixed_size 0
  .amdhsa_kernarg_size 96
  .amdhsa_user_sgpr_count 2
  .amdhsa_user_sgpr_kernarg_segment_ptr 1
  .amdhsa_system_sgpr_workgroup_id_x 1
.end_amdhsa_kernel
"""
open(sys.argv[1] if len(sys.argv) > 1 else 'cdna_kernels/' + NAME + '.s', 'w').write(out)
```

```python
from gen_common import *
def prologue(a):
    a("""s_load_dwordx16 s[32:47], s[0:1], 0
    s_load_dwordx8 s[48:55], s[0:1], 64
    v_and_b32 v1, 63, v0
    v_lshrrev_b32 v4, 6, v0
    v_and_b32 v2, 15, v0
    v_bfe_u32 v3, v0, 4, 2
    v_readfirstlane_b32 s4, v4""")

def gen_ka(a):
    X, TF, ACC, SUM, SQ, CS, ONES = 64, 32, 8, 24, 28, 128, 132
    TB = 65536
    for lay in (0, 1):
        a.raw(f".p2align 8\n.globl ka{lay}_kernel\n.type ka{lay}_kernel,@function")
        a.label(f"ka{lay}_kernel")
        a(f"s_mov_b32 s3, {lay}\ns_branch ka_body")
    a.label("ka_body")
    a.stamp(0)
    prologue(a)
    if int(os.environ.get("PF", "1")) >= 1:
        a("s_cmp_ge_u32 s2, 32\ns_cbranch_scc1 ka_nopf0\ns_cmp_lg_u32 s3, 0\ns_cbranch_scc1 ka_nopf0\ns_getpc_b64 s[56:57]")
        a.label("ka_pc0")
        a("""s_mov_b32 s58, ks0_kernel-ka_pc0
        s_mov_b32 s59, 0x00020000
        s_lshl_b32 s7, s4, 11
        v_lshl_add_u32 v4, v1, 4, s7
        buffer_load_dwordx4 v[204:207], v4, s[56:59], 0 offen
        buffer_load_dwordx4 v[204:207], v4, s[56:59], 0 offen offset:1024""")
        a.label("ka_nopf0")
    a("""s_cmp_ge_u32 s2, 256
    s_cbranch_scc1 ka_exit
    s_and_b32 s5, s2, 7
    s_lshl_b32 s5, s5, 2
    s_bfe_u32 s6, s2, 0x20003
    s_add_u32 s5, s5, s6
    s_lshr_b32 s6, s2, 5
    v_and_b32 v4, 15, v1
    v_lshrrev_b32 v5, 4, v1""")
    a("""s_lshl_b32 s7, s4, 19
    s_lshl_b32 s28, s5, 10
    s_add_u32 s28, s28, s7
    s_and_b32 s7, s4, 1
    s_lshl_b32 s7, s7, 4
    s_lshl_b32 s29, s6, 5
    s_add_u32 s7, s7, s29
    v_mov_b32 v9, 0x100""")
    for i in range(4):
        a(f"""v_add_u32 v6, {4*i}, v5
        v_xor_b32 v7, v4, v6
        v_lshlrev_b32 v7, 4, v7
        v_lshl_add_u32 v{136+i}, v6, 15, v7
        v_add_u32 v{136+i}, s28, v{136+i}
        v_add_u32 v6, s7, v6
        v_cmp_eq_u32 vcc, 0, v6
        v_cndmask_b32 v6, v6, v9, vcc
        v_lshl_add_u32 v{140+i}, v6, 10, v7""")
    a("s_waitcnt lgkmcnt(0)")
    a.stamp(1)
    if int(os.environ.get('CLAIM', '0')):
        a("s_add_u32 s7, s2, s4\ns_cmp_lg_u32 s7, 0\ns_cbranch_scc1 ka_nozero")
        srd(a, 56, 54, WS_CNT, 4096)
        a("v_lshlrev_b32 v6, 8, v1\nv_mov_b32 v7, 0\nbuffer_store_dword v7, v6, s[56:59], 0 offen")
        a.label("ka_nozero")
    a(f"""s_add_u32 s12, s54, 0x{WS_X2:x}
    s_addc_u32 s13, s55, 0
    s_cmp_eq_u32 s3, 0
    s_cselect_b32 s8, s32, s12
    s_cselect_b32 s9, s33, s13
    s_mov_b32 s10, 0x200000
    s_mov_b32 s11, 0x00020000
    s_cmp_lt_u32 s4, 2
    s_cselect_b32 s12, s38, s40
    s_cselect_b32 s13, s39, s41
    s_mov_b32 s14, 0x80000
    s_mov_b32 s15, 0x00020000
    s_lshl_b32 s30, s4, 12""")
    def issue(kq):
        for i in range(4):
            a(f"s_add_u32 m0, s30, {TB + kq*16384 + i*1024 - kq*256}")
            a(f"s_nop 0\nbuffer_load_dwordx4 v{140+i}, s[12:15], 0 offen offset:{kq*256} lds")
            a(f"s_add_u32 m0, s30, {kq*16384 + i*1024 - kq*256}")
            a(f"s_nop 0\nbuffer_load_dwordx4 v{136+i}, s[8:11], 0 offen offset:{kq*256} lds")
    issue(0); issue(1)
    srd(a, 60, 48, 0, 1792*512*2)
    a("""s_cmp_lt_u32 s2, 224
    s_cselect_b32 s7, 1, 0
    s_cmp_eq_u32 s3, 0
    s_cselect_b32 s94, s7, 0
    s_cmp_eq_u32 s94, 0
    s_cselect_b32 s62, 0, s62
    v_and_b32 v6, 7, v1
    v_bfe_u32 v7, v1, 4, 1
    v_lshlrev_b32 v7, 1, v7
    v_xor_b32 v6, v6, v7
    s_lshr_b32 s28, s2, 3
    s_and_b32 s29, s2, 7
    v_lshrrev_b32 v5, 3, v1
    s_lshl_b32 s7, s4, 4
    v_add_u32 v5, s7, v5
    s_lshl_b32 s7, s28, 6
    v_add_u32 v4, s7, v5
    v_lshlrev_b32 v4, 10, v4
    s_lshl_b32 s7, s29, 7
    v_add_u32 v4, s7, v4
    v_lshl_add_u32 v172, v6, 4, v4
    v_xor_b32 v173, 64, v172
    v_add_u32 v173, 8192, v173
    s_lshl_b32 s31, s4, 11
    s_add_u32 m0, s31, 131072
    s_nop 0
    buffer_load_dwordx4 v172, s[60:63], 0 offen lds
    s_add_u32 m0, s31, 132096
    s_nop 0
    buffer_load_dwordx4 v173, s[60:63], 0 offen lds""")
    if int(os.environ.get("PF", "1")):
        a("s_cmp_lt_u32 s2, 224\ns_cbranch_scc1 ka_nopf\ns_cmp_lg_u32 s3, 0\ns_cbranch_scc1 ka_nopf\ns_getpc_b64 s[56:57]")
        a.label("ka_pc")
        a("""s_add_u32 s56, s56, ks0_kernel-ka_pc
        s_addc_u32 s57, s57, 0
        s_mov_b32 s58, text_end-ks0_kernel
        s_mov_b32 s59, 0x00020000
        s_mul_i32 s7, s4, 5120
        v_lshl_add_u32 v4, v1, 4, s7""")
        for i in range(5):
            a(f"buffer_load_dwordx4 v[204:207], v4, s[56:59], 0 offen offset:{(i%4)*1024}" if i < 4 else "v_add_u32 v4, 4096, v4\nbuffer_load_dwordx4 v[204:207], v4, s[56:59], 0 offen")
        a.label("ka_nopf")
    UP = int(os.environ.get("UP", "0"))
    if UP:
        a("s_cmp_lg_u32 s3, 0\ns_cbranch_scc1 ka_noup")
        issue(2); issue(3)
        a.label("ka_noup")
    a.stamp(9)
    srd(a, 24, 54, WS_V, 0x200000)
    a("""s_lshl_b32 s7, s4, 4
    v_add_u32 v4, s7, v2
    v_lshlrev_b32 v5, 8, v3
    v_add_u32 v5, s5, v5
    v_mul_lo_u32 v5, v5, v4
    v_lshlrev_b32 v6, 5, v4
    v_and_b32 v7, 1, v4
    v_mov_b32 v8, 0x80008000
    v_mul_lo_u32 v7, v7, v8""")
    for j in range(8):
        a(f"""v_and_b32 v9, 0x7ff, v5
        v_cvt_f32_u32 v9, v9
        v_mul_f32 v9, 0x3a000000, v9
        v_cos_f32 v{10+j}, v9
        v_sin_f32 v{18+j}, v9""")
        if j < 7: a("v_add_u32 v5, v5, v6")
    for jj in range(4):
        a(f"""v_cvt_pk_bf16_f32 v{180+jj}, v{10+2*jj}, v{11+2*jj}
        v_cvt_pk_bf16_f32 v{196+jj}, v{18+2*jj}, v{19+2*jj}
        v_xor_b32 v{184+jj}, v7, v{180+jj}
        v_xor_b32 v{200+jj}, v7, v{196+jj}
        v_xor_b32 v{188+jj}, v8, v{196+jj}
        v_xor_b32 v{192+jj}, v8, v{200+jj}""")
    for jj in range(4):
        a(f"v_add_u32 v4, {4*jj}, v3\nv_xor_b32 v4, v4, v2\nv_lshlrev_b32 v4, 4, v4\nv_lshl_add_u32 v{146+jj}, v2, 8, v4")
        a(f"v_add_u32 v{150+jj}, s30, v{146+jj}")
    for i in range(4):
        a(f"s_add_u32 s7, s4, {i}\ns_and_b32 s7, s7, 3\ns_lshl_b32 s7, s7, 12\ns_add_u32 s{56+i}, s7, {TB}")
    for jj in range(4):
        for i in range(4):
            a(f"v_add_u32 v{156+4*jj+i}, s{56+i}, v{146+jj}")
    for i in range(4):
        a(f"v_mov_b32 v{ONES+i}, 0x3f803f80")
    def rd(j):
        b = TF + 16*(j & 1); kq = j >> 2; jj = j & 3
        a(f"ds_read_b128 {vr(X+4*(j&1),4)}, v{150+jj} offset:{kq*16384}")
        for i in range(4):
            a(f"ds_read_b128 {vr(b+4*i,4)}, v{156+4*jj+i} offset:{kq*16384}")
    for grp in range(4):
        if UP and grp < 2:
            a(f"s_cmp_lg_u32 s3, 0\ns_cbranch_scc1 ka_w1_{grp}\ns_waitcnt vmcnt({(26, 16)[grp]})\ns_barrier\ns_branch ka_w2_{grp}")
            a.label(f"ka_w1_{grp}")
        a(f"s_waitcnt vmcnt({(10, 8, 8, 0)[grp]})\ns_barrier")
        a.stamp(2+grp)
        if grp < 2: issue(grp+2)
        if UP and grp < 2: a.label(f"ka_w2_{grp}")
        if grp == 1:
            a("s_cmp_eq_u32 s94, 0\ns_cbranch_scc1 ka_nowd")
            srd(a, 60, 54, WS_WD, 16*112*1024)
            a("""v_lshrrev_b32 v4, 2, v2
            v_and_b32 v5, 3, v2
            v_lshrrev_b32 v6, 5, v1
            v_bfe_u32 v7, v1, 4, 1
            v_lshrrev_b32 v172, 1, v4
            s_lshl_b32 s7, s4, 4
            v_lshl_add_u32 v173, v6, 2, v4
            v_add_u32 v173, s7, v173
            v_lshlrev_b32 v173, 7, v173
            v_lshl_add_u32 v173, v5, 3, v173
            v_add_u32 v173, 131072, v173""")
            for aa in (0, 1):
                for u in (0, 1):
                    a(f"v_lshl_or_b32 v4, {u}, 1, v172\nv_or_b32 v5, {2*aa}, v7\nv_xor_b32 v4, v4, v5\nv_lshl_add_u32 v4, v4, 5, v173")
                    a(f"ds_read_b64_tr_b16 {vr(204+4*aa+2*u,2)}, v4 offset:{u*1024}")
            a("""s_lshr_b32 s28, s2, 3
            s_and_b32 s29, s2, 7
            s_mul_i32 s7, s29, 224
            s_lshl_b32 s28, s28, 2
            s_add_u32 s7, s7, s28
            s_add_u32 s7, s7, s4
            s_lshl_b32 s7, s7, 10
            v_lshl_add_u32 v174, v1, 4, s7
            s_waitcnt lgkmcnt(0)""")
            a.label("ka_nowd")
        if grp == 3:
            a("s_cmp_eq_u32 s94, 0\ns_cbranch_scc1 ka_nowd2")
            for aa in (0, 1):
                a(f"s_mov_b32 s7, {aa*112*1024}\nbuffer_store_dwordx4 {vr(204+4*aa,4)}, v174, s[60:63], s7 offen")
            a.label("ka_nowd2")
        rd(4*grp)
        for j in range(4*grp, 4*grp+4):
            if j % 4 != 3:
                rd(j+1); a("s_waitcnt lgkmcnt(5)")
            else:
                a("s_waitcnt lgkmcnt(0)")
            b = TF + 16*(j & 1); x = vr(X+4*(j&1), 4)
            c = lambda r: "0" if j == 0 else vr(r, 4)
            for i in range(4):
                a(f"v_mfma_f32_16x16x32_bf16 {vr(ACC+4*i,4)}, {vr(b+4*i,4)}, {x}, {c(ACC+4*i)}")
            a(f"v_mfma_f32_16x16x32_bf16 {vr(SUM,4)}, {vr(ONES,4)}, {x}, {c(SUM)}")
            a(f"v_mfma_f32_16x16x32_bf16 {vr(SQ,4)}, {x}, {x}, {c(SQ)}")
            a(f"v_mfma_f32_16x16x32_bf16 {vr(CS,4)}, {vr(b,4)}, {vr(ONES,4)}, {c(CS)}")
    a.stamp(6)
    a(f"""s_nop 7
    s_nop 3
    s_lshl_b32 s7, s4, 6
    v_lshl_add_u32 v4, v3, 4, s7
    v_cmp_eq_u32 vcc, 0, v2
    s_and_saveexec_b64 s[56:57], vcc
    ds_write_b128 v4, {vr(CS,4)}
    s_mov_b64 exec, s[56:57]
    v_and_b32 v5, 3, v2
    v_cmp_eq_u32 vcc, 1, v5
    v_cndmask_b32 v6, v{SQ}, v{SQ+1}, vcc
    v_cmp_eq_u32 vcc, 2, v5
    v_cndmask_b32 v6, v6, v{SQ+2}, vcc
    v_cmp_eq_u32 vcc, 3, v5
    v_cndmask_b32 v6, v6, v{SQ+3}, vcc
    v_lshrrev_b32 v5, 2, v2
    v_lshl_add_u32 v5, v5, 4, v2
    v_lshlrev_b32 v5, 2, v5
    ds_bpermute_b32 v6, v5, v6
    v_mul_f32 v7, 0x3b000000, v{SUM}
    s_waitcnt lgkmcnt(0)
    s_barrier
    v_mul_f32 v6, 0x3b000000, v6
    v_fma_f32 v6, -v7, v7, v6
    v_add_f32 v6, 0x3727c5ac, v6
    v_rsq_f32 v6, v6""")
    for i in range(4):
        a(f"s_add_u32 s7, s4, {i}\ns_and_b32 s7, s7, 3\ns_lshl_b32 s28, s7, 6\nv_lshl_add_u32 v4, v3, 4, s28")
        a(f"ds_read_b128 {vr(TF+4*i,4)}, v4")
        if i == 0:
            a("""v_bfe_u32 v144, v2, 1, 1
            v_bfe_u32 v145, v2, 3, 1
            v_lshl_or_b32 v144, v145, 1, v144
            s_lshl_b32 s29, s4, 4
            v_add_u32 v145, s29, v2
            v_lshlrev_b32 v145, 7, v145
            v_lshl_add_u32 v145, v3, 3, v145
            v_add_u32 v145, 1024, v145""")
        a(f"v_xor_b32 v5, s7, v144\nv_lshl_add_u32 v{146+i}, v5, 5, v145")
    a("v_sub_f32 v7, 0, v7\ns_waitcnt lgkmcnt(0)")
    for i in range(4):
        for r in range(4):
            a(f"v_fma_f32 v{ACC+4*i+r}, v7, v{TF+4*i+r}, v{ACC+4*i+r}")
            a(f"v_mul_f32 v{ACC+4*i+r}, v6, v{ACC+4*i+r}")
        a(f"v_cvt_pk_bf16_f32 v{ACC+4*i}, v{ACC+4*i}, v{ACC+4*i+1}")
        a(f"v_cvt_pk_bf16_f32 v{ACC+4*i+1}, v{ACC+4*i+2}, v{ACC+4*i+3}")
        a(f"ds_write_b64 v{146+i}, {vr(ACC+4*i,2)}")
    a("""v_lshrrev_b32 v4, 2, v2
    v_and_b32 v5, 3, v2
    v_lshrrev_b32 v6, 1, v4
    v_and_b32 v7, 1, v3
    v_lshl_or_b32 v6, v7, 1, v6
    v_lshl_add_u32 v7, v3, 3, v4
    v_lshlrev_b32 v7, 7, v7
    v_lshrrev_b32 v150, 1, v5
    v_xor_b32 v150, v150, v6
    v_and_b32 v151, 1, v5
    v_lshlrev_b32 v151, 4, v151
    v_add_u32 v151, v151, v7
    v_add_u32 v151, 1024, v151
    v_lshl_add_u32 v152, v150, 5, v151
    v_xor_b32 v150, 2, v150
    v_lshl_add_u32 v153, v150, 5, v151
    s_waitcnt lgkmcnt(0)
    s_barrier""")
    a.stamp(7)
    for cc in (0, 1):
        for st in (0, 1):
            for kap in (0, 1):
                for u in (0, 1):
                    a(f"ds_read_b64_tr_b16 {vr(64+16*cc+8*st+4*kap+2*u,2)}, v{152+cc} offset:{kap*4096+u*512+st*8}")
    a("s_waitcnt lgkmcnt(0)")
    for st in (0, 1):
        for out in (0, 1):
            d = vr(96+8*out+4*st, 4)
            first = True
            for kap in (0, 1):
                A1 = vr(64+16*out+8*st+4*kap, 4)
                A2 = vr(64+16*(1-out)+8*st+4*kap, 4)
                B2 = vr((196 if out == 0 else 188)+4*kap, 4)
                a(f"v_mfma_f32_16x16x32_bf16 {d}, {A1}, {vr(180+4*kap,4)}, {'0' if first else d}")
                a(f"v_mfma_f32_16x16x32_bf16 {d}, {A2}, {B2}, {d}")
                first = False
    a("""s_lshl_b32 s7, s4, 4
    v_add_u32 v4, s7, v2
    v_lshlrev_b32 v4, 15, v4
    v_lshl_add_u32 v4, v3, 4, v4
    s_lshl_b32 s28, s5, 10
    s_lshl_b32 s29, s6, 6
    s_add_u32 s28, s28, s29
    v_add_u32 v4, s28, v4
    s_waitcnt vmcnt(0)
    s_nop 7""")
    for out in (0, 1):
        b = 96+8*out
        a(f"""v_cvt_pk_bf16_f32 v{b}, v{b}, v{b+1}
        v_cvt_pk_bf16_f32 v{b+1}, v{b+2}, v{b+3}
        v_cvt_pk_bf16_f32 v{b+2}, v{b+4}, v{b+5}
        v_cvt_pk_bf16_f32 v{b+3}, v{b+6}, v{b+7}
        buffer_store_dwordx4 {vr(b,4)}, v4, s[24:27], 0 offen offset:{out*512}""")
    a.stamp(8)
    a.label("ka_done")
    a.dump(12, "ka")
    a.label("ka_exit")
    a("s_endpgm")


def gen_prep(a):
    srd(a, 40, 44, 0, 512*1792*2); srd(a, 44, 46, 0, 512*1792*2); srd(a, 60, 48, 0, 1792*512*2)
    srd(a, 8, 54, WS_WA, 112*32768); srd(a, 12, 54, WS_WD, 16*112*1024)
    a("""v_and_b32 v6, 7, v1
    v_bfe_u32 v7, v1, 4, 1
    v_lshlrev_b32 v7, 1, v7
    v_xor_b32 v20, v6, v7
    s_lshl_b32 s31, s4, 11""")
    for j in (0, 1):
        a(f"""s_add_u32 s7, s95, {112*j}
        s_lshr_b32 s28, s7, 3
        s_and_b32 s29, s7, 7
        v_lshrrev_b32 v5, 3, v1
        s_lshl_b32 s7, s4, 4
        v_add_u32 v5, s7, v5
        s_lshl_b32 s7, s29, 6
        v_add_u32 v4, s7, v5
        s_movk_i32 s7, 3584
        v_mul_lo_u32 v4, v4, s7
        s_lshl_b32 s7, s28, 7
        v_add_u32 v4, s7, v4
        v_lshl_add_u32 v22, v20, 4, v4
        v_xor_b32 v23, 64, v22
        v_add_u32 v23, 28672, v23
        s_lshl_b32 s7, s28, 6
        v_add_u32 v4, s7, v5
        v_lshlrev_b32 v4, 10, v4
        s_lshl_b32 s7, s29, 7
        v_add_u32 v4, s7, v4
        v_lshl_add_u32 v24, v20, 4, v4
        v_xor_b32 v25, 64, v24
        v_add_u32 v25, 8192, v25""")
        for mi, (R, v) in enumerate(((40, 22), (44, 22))):
            for aa in (0, 1):
                a(f"s_add_u32 m0, s31, {j*24576 + mi*8192 + aa*1024}\ns_nop 0")
                a(f"buffer_load_dwordx4 v{v+aa}, s[{R}:{R+3}], 0 offen lds")
    a("""v_lshrrev_b32 v4, 2, v2
    v_and_b32 v5, 3, v2
    v_lshrrev_b32 v6, 5, v1
    v_bfe_u32 v7, v1, 4, 1
    v_lshrrev_b32 v8, 1, v4
    v_lshl_or_b32 v9, v6, 1, v8
    s_lshl_b32 s7, s4, 4
    v_lshl_add_u32 v10, v6, 3, v4
    v_add_u32 v10, s7, v10
    v_lshlrev_b32 v10, 7, v10
    v_lshl_add_u32 v10, v5, 3, v10
    v_lshl_add_u32 v10, v7, 13, v10
    v_lshl_add_u32 v11, v6, 2, v4
    v_add_u32 v11, s7, v11
    v_lshlrev_b32 v11, 7, v11
    v_lshl_add_u32 v11, v5, 3, v11
    v_add_u32 v11, 16384, v11""")
    for j in (0, 1):
        a(f"s_waitcnt vmcnt({4 if j == 0 else 0})")
        for b in range(4):
            a(f"v_xor_b32 v12, {b}, v9\nv_lshl_add_u32 v12, v12, 5, v10")
            for u in (0, 1): a(f"ds_read_b64_tr_b16 {vr(32+4*b+2*u,2)}, v12 offset:{j*24576+u*512}")
        a(f"""s_add_u32 s7, s95, {112*j}
        s_lshr_b32 s28, s7, 3
        s_and_b32 s29, s7, 7
        s_lshl_b32 s7, s28, 7
        s_lshl_b32 s30, s29, 2
        s_add_u32 s7, s7, s30
        s_add_u32 s7, s7, s4
        s_lshl_b32 s7, s7, 10
        v_lshl_add_u32 v14, v1, 4, s7
        s_mul_i32 s7, s29, 224
        s_lshl_b32 s30, s28, 2
        s_add_u32 s7, s7, s30
        s_add_u32 s7, s7, s4
        s_lshl_b32 s7, s7, 10
        v_lshl_add_u32 v15, v1, 4, s7
        s_waitcnt lgkmcnt(0)""")
        for b in range(4):
            a(f"s_mov_b32 s7, {b*32768}\nbuffer_store_dwordx4 {vr(32+4*b,4)}, v14, s[8:11], s7 offen")
        if j == 0: a("s_nop 1")
```
